```python
import torch

def _softmax(x, axis=-1):
    return torch.softmax(x, dim=axis)
def _gelu(x):
    return torch.nn.functional.gelu(x, approximate="tanh")
def _silu(x):
    return torch.nn.functional.silu(x)
def _sigmoid(x):
    return torch.sigmoid(x)
def _layernorm(x, axis=-1, eps=1e-5):
    m = x.mean(dim=axis, keepdim=True)
    v = x.var(dim=axis, keepdim=True, unbiased=False)
    return (x - m) / torch.sqrt(v + eps)
def _scatter_add(tgt, idx, src, axis=0):
    return tgt.clone().index_add_(axis, idx, src)
def _segment_sum(src, seg, n):
    out = torch.zeros((n,) + src.shape[1:], dtype=src.dtype)
    return out.index_add_(0, seg, src)
def _pad(x, pw):
    flat = tuple(v for pair in reversed(pw) for v in pair)
    return torch.nn.functional.pad(x, flat)

kernel_name = 'recurrent_scan__sliding_block_cached__geglu_ffn__decode'

def setup_inputs():

    _w = (lambda a: (lambda t: t.to(torch.bfloat16) if t.is_floating_point() else t)(torch.as_tensor(a)))
    def _A_setup():
        B, Sq, D = 1, 1, 1024
        Hq, Hkv, Sk, Dh = 32, 4, 65536, 128
        assert Hq % Hkv == 0, (Hq, Hkv)
        return {
            "x": _w((lambda *s: torch.randn(*s, dtype=torch.bfloat16) * 0.05)(B, Sq, D)),
            "k_cache": _w((lambda *s: torch.randn(*s, dtype=torch.bfloat16) * 1.6)(B, Hkv, Sk, Dh)),
            "v_cache": _w((lambda *s: torch.randn(*s, dtype=torch.bfloat16) * 0.2)(B, Hkv, Sk, Dh)),
            "wq": _w((lambda *s: torch.randn(*s, dtype=torch.bfloat16) * 1.6)(D, Hq * Dh) * (D ** -0.5)),
            "wo": _w((lambda *s: torch.randn(*s, dtype=torch.bfloat16) * 0.2)(Hq * Dh, D) * ((Hq * Dh) ** -0.5)),
        }
    _A_in = _A_setup()

    def _B_setup():
        B, S, D, F = 1, 1, 1024, 3584
        return {
            "x": _w((lambda *s: torch.randn(*s, dtype=torch.bfloat16) * 0.05)(B, S, D)),
            "w_gate": _w((lambda *s: torch.randn(*s, dtype=torch.bfloat16) * 0.1)(D, F)),
            "w_up": _w((lambda *s: torch.randn(*s, dtype=torch.bfloat16) * 0.1)(D, F)),
            "w_down": _w((lambda *s: torch.randn(*s, dtype=torch.bfloat16) * 0.1)(F, D)),
        }
    _B_in = _B_setup()

    return {
        "A_x": _A_in["x"],
        "A_k_cache": _A_in["k_cache"],
        "A_v_cache": _A_in["v_cache"],
        "A_wq": _A_in["wq"],
        "A_wo": _A_in["wo"],
        "B_x": _B_in["x"],
        "B_w_gate": _B_in["w_gate"],
        "B_w_up": _B_in["w_up"],
        "B_w_down": _B_in["w_down"],
    }

def reference(A_x, A_k_cache, A_v_cache, A_wq, A_wo, B_x, B_w_gate, B_w_up, B_w_down):
    def _A_ref(x, k_cache, v_cache, wq, wo):
        B, Sq, D = x.shape
        Hq, Dh = 32, 128
        Hkv, Sk = k_cache.shape[1], k_cache.shape[2]
        W = min(4096, max(256, Sk // 4))
        rep = Hq // Hkv
        q = (lambda x, *d: x.permute(*d))((x @ wq).reshape(B, Sq, Hq, Dh), 0, 2, 1, 3)
        k = (lambda x, n, axis: torch.repeat_interleave(x, n, dim=axis))(k_cache[:, :, Sk - W:, :], rep, axis=1)
        v = (lambda x, n, axis: torch.repeat_interleave(x, n, dim=axis))(v_cache[:, :, Sk - W:, :], rep, axis=1)
        scores = torch.einsum("bhqd,bhkd->bhqk", q, k) * (Dh ** -0.5)
        p = _softmax(scores, axis=-1)
        o = torch.einsum("bhqk,bhkd->bhqd", p, v)
        return (lambda x, *d: x.permute(*d))(o, 0, 2, 1, 3).reshape(B, Sq, Hq * Dh) @ wo

    def _B_ref(x, w_gate, w_up, w_down):
        return (_gelu(x @ w_gate) * (x @ w_up)) @ w_down

    x = A_x
    xn = _layernorm(x, axis=-1)
    s = _A_ref(xn, A_k_cache, A_v_cache, A_wq, A_wo)
    g = _silu(_B_ref(xn, B_w_gate, B_w_up, B_w_down))
    return x + s * g
```

```python
KNAME = "recurrent_scan__sliding_block_cached__geglu_ffn__decode"
class Asm:
    def __init__(self): self.l=[]; self.uid=0
    def __call__(self, s):
        for x in s.strip("\n").split("\n"): self.l.append("    "+x.strip())
    def label(self, n): self.l.append(n+":")
    def newlabel(self, p="L"):
        self.uid+=1; return f"{p}_{self.uid}"
    def text(self): return "\n".join(self.l)+"\n"

def wrap(body, grid, block, lds, vgpr, sgpr=102, accum=None, header=""):
    if accum is None: accum=min(256,(vgpr+3)//4*4)
    k=KNAME+"_kernel"
    return f"""{header}; @launch grid=({grid},1,1) block=({block},1,1) lds={lds}
.amdgcn_target "amdgcn-amd-amdhsa--gfx950"
.text
.globl {k}
.p2align 8
.type {k},@function
{k}:
{body}
.section .rodata,"a"
.p2align 6
.amdhsa_kernel {k}
  .amdhsa_next_free_vgpr {vgpr}
  .amdhsa_next_free_sgpr {sgpr}
  .amdhsa_accum_offset {accum}
  .amdhsa_group_segment_fixed_size 0
  .amdhsa_kernarg_size 96
  .amdhsa_user_sgpr_count 2
  .amdhsa_user_sgpr_kernarg_segment_ptr 1
  .amdhsa_system_sgpr_workgroup_id_x 1
.end_amdhsa_kernel
"""
```

```python
import re
TRANS=("v_exp_f32","v_log_f32","v_rcp_f32","v_rsq_f32","v_sqrt_f32","v_sin_f32","v_cos_f32")
def regs_of(tok):
    tok=tok.strip()
    tok=re.sub(r"^-|^abs\(|\)$|^\|","",tok).strip("|")
    m=re.fullmatch(r"([vsa])\[(\d+):(\d+)\]",tok)
    if m: return {(m.group(1),i) for i in range(int(m.group(2)),int(m.group(3))+1)}
    m=re.fullmatch(r"([vsa])(\d+)",tok)
    if m: return {(m.group(1),int(m.group(2)))}
    if tok=="vcc": return {("s","vcc")}
    if tok in("vcc_lo","vcc_hi"): return {("s","vcc")}
    if tok=="m0": return {("s","m0")}
    if tok in("exec","exec_lo","exec_hi"): return {("s","exec")}
    return set()
class I:
    def __init__(s,line):
        s.line=line; t=line.split(";")[0].strip()
        s.label = t.endswith(":")
        s.dir = t.startswith(".") or t==""
        s.op=""; s.w=set(); s.r=set(); s.cls=""; s.A=set(); s.B=set(); s.C=set(); s.target=None
        s.dpp=False; s.mask=set(); s.sdata=set()
        if s.label or s.dir: return
        p=t.split(None,1); s.op=op=p[0]
        rest=p[1] if len(p)>1 else ""
        ops=[x.strip() for x in rest.split(",")] if rest else []
        mods=""
        if ops:
            q=ops[-1].split(None,1); ops[-1]=q[0]; mods=q[1] if len(q)>1 else ""
        s.ops=ops; s.mods=mods
        R=[regs_of(o) for o in ops]
        allr=lambda L:set().union(*L) if L else set()
        if op.startswith("v_mfma"):
            s.cls="mfma"; s.w=R[0]; s.A=R[1]; s.B=R[2]; s.C=R[3]; s.r=R[1]|R[2]|R[3]
            s.passes = 8 if "32x32" in op else (2 if "4x4" in op else 4)
        elif op.startswith("v_"):
            s.cls="valu"
            s.dpp = bool(re.search(r"row_|quad_perm|wave_",mods))
            base=re.sub(r"_(e32|e64|dpp|sdwa)$","",op)
            s.base=base
            if base.startswith("v_permlane") and "swap" in base:
                s.w=R[0]|R[1]; s.r=R[0]|R[1]
            elif base.startswith("v_cmp"):
                s.w=R[0]; s.r=allr(R[1:])
            elif base in("v_add_co_u32","v_sub_co_u32","v_addc_co_u32"):
                s.w=R[0]|R[1]; s.r=allr(R[2:])
            else:
                s.w=R[0]; s.r=allr(R[1:])
                if base in("v_fmac_f32","v_dot2c_f32_bf16","v_writelane_b32") or s.dpp: s.r|=R[0]
                if base=="v_cndmask_b32" and len(ops)==3: s.r|={("s","vcc")}
        elif op.startswith("buffer_") or op.startswith("global_"):
            s.cls="vmem"
            lds = " lds" in (" "+mods) or "_lds_" in op
            if "load" in op and not lds:
                s.w=R[0]; s.r=allr(R[1:])
                if "d16" in op: s.r|=R[0]
            else:
                s.r=allr(R)
                if "store" in op and ("x4" in op or "x3" in op):
                    s.sdata = R[0] if op.startswith("buffer_") else R[1]
            if lds: s.r|={("s","m0")}; s.lds=True
        elif op.startswith("ds_"):
            s.cls="ds"
            if "read" in op or "permute" in op or "swizzle" in op or "rtn" in op:
                s.w=R[0]; s.r=allr(R[1:])
            else: s.r=allr(R)
        elif op.startswith("s_"):
            s.cls="salu"
            if op.startswith("s_cbranch") or op=="s_branch": s.target=ops[0]
            elif op.startswith("s_cmp") or op.startswith("s_bitcmp") or op in("s_waitcnt","s_nop","s_barrier","s_endpgm","s_sleep","s_setprio"): s.r=allr(R)
            else:
                s.w=R[0] if R else set(); s.r=allr(R[1:])
                if "saveexec" in op: s.w|={("s","exec")}
    def states(s):
        if s.label or s.dir: return 0
        if s.op=="s_nop": return int(s.ops[0],0)+1
        return 1
def V(x): return {r for r in x if r[0] in "va"}
def S(x): return {r for r in x if r[0]=="s"}
def need(p,c):
    n=0
    if p.cls=="valu":
        wv=V(p.w); ws=S(p.w)
        isdot=p.base.startswith("v_dot")
        if c.cls=="mfma" and wv&c.r: n=max(n,2)
        if c.cls=="valu":
            if c.dpp and wv&c.r: n=max(n,2)
            if c.base.startswith("v_permlane") and wv&c.r: n=max(n,2)
            if c.base in("v_readlane_b32","v_readfirstlane_b32") and wv&c.r: n=max(n,1)
            if ws&c.r:
                n=max(n,2)
                if c.base in("v_readlane_b32","v_writelane_b32"): n=max(n,4)
            if p.base in TRANS and wv&c.r and c.base not in TRANS: n=max(n,1)
            if "sdwa" in p.op and "dst_sel:DWORD" not in p.mods and wv&(c.r|c.w): n=max(n,1)
        if isdot and wv&(c.r|c.w):
            same = c.cls=="valu" and c.base==p.base
            if same:
                srcAB=regs_of(c.ops[1])|regs_of(c.ops[2])
                if wv&srcAB: n=max(n,3)
            else: n=max(n,3)
        if c.cls=="vmem" and ws&c.r: n=max(n,5)
        if c.cls=="salu" and ws&c.r: n=max(n,1)
    if p.cls=="mfma":
        tbl={2:(5,4,1),4:(8,6,3),8:(12,10,7)}[p.passes]
        if c.cls=="mfma":
            if p.w&(c.A|c.B): n=max(n,tbl[0])
            if p.w&c.C and not (p.w==c.C and p.passes==c.passes): n=max(n,tbl[1])
            if p.w&c.C and p.passes==2: n=max(n,2)
            if p.w&c.w and not p.w&c.C: n=max(n,tbl[1])
        elif c.cls in("valu","vmem","ds"):
            if p.w&(c.r|c.w): n=max(n,tbl[0])
            if c.cls=="valu" and p.C&c.w: n=max(n,tbl[2])
    if p.cls=="vmem" and p.sdata:
        if p.sdata&c.w: n=max(n,2 if c.cls in("valu","mfma") else 1)
    if p.cls=="salu" and ("s","m0") in p.w and c.cls=="vmem" and ("s","m0") in c.r: n=max(n,1)
    return n
WIN=20
def pad(lines):
    ins=[I(l) for l in lines]
    out=[]; added=0
    labels={}
    for k,i in enumerate(ins):
        if i.label: labels[i.line.split(";")[0].strip()[:-1]]=k
    def deficit(hist,c):
        d=0; dist=0
        for p in reversed(hist):
            if dist>=WIN: break
            n=need(p,c) if p.cls else 0
            if n>dist: d=max(d,n-dist)
            dist+=p.states()
        return d
    hist=[]
    for k,i in enumerate(ins):
        if i.label or i.dir:
            out.append(i); continue
        d=deficit(hist,i)
        if i.target is not None and i.target in labels:
            extra=0
            while True:
                h=list(hist)+([I(f"s_nop {d+extra-1}")] if d+extra>0 else [])+[i]
                bad=0; j=labels[i.target]; cnt=0
                while j<len(ins) and cnt<WIN:
                    c=ins[j]; j+=1
                    if c.label or c.dir: continue
                    if cnt==0:
                        bad=deficit(h,c)
                    else:
                        dd=0; dist=0
                        for p in reversed(h):
                            if dist>=WIN: break
                            if p in hist:
                                n=need(p,c) if p.cls else 0
                                if n>dist: dd=max(dd,n-dist)
                            dist+=p.states()
                        bad=max(bad,dd)
                    if bad: break
                    h.append(c); cnt+=c.states()
                    if c.op in("s_branch","s_endpgm"): break
                if not bad: break
                extra+=bad
            d+=extra
        if d>0:
            n=I(f"    s_nop {d-1}"); out.append(n); hist.append(n); added+=1
        out.append(i); hist.append(i)
        if i.op in("s_branch","s_endpgm"): hist=[]
        hist=hist[-WIN-2:]
    return [i.line for i in out], added
```

```python
import sys, json
from asmlib import KNAME
import hazard
MB=1<<20
EPOCH=0; QS=0x1000; GS=0x5000; US=0x9000; OS=0xD000; ST=0x11000
PART=0x20000; FS=0xA0000; FY=0xE0000; WS_USED=0x120000; STAMP=0x200000
KB=0; VB=65536; PB=131072; SB=135168; LDS_BYTES=135680
XN=0; EX=4096
LOG2E=0x3fb8aa3b

DEF=dict(mapq=0, DQ=32, DG0=4, DG1=12, DGs=6, DA0=8, DA1=12, DAs=8, D2=4, KPW=10, KPD=9,
         stamps=0, nt="nt", slq=1, slc=1, sls=1, slf=0, qgate=1, ldelay=0)

class G:
    def __init__(s,cfg):
        s.c=dict(DEF); s.c.update(cfg); s.l=[]; s.vm=[]; s.uid=0
    def __call__(s,t):
        for x in t.strip("\n").split("\n"):
            x=x.strip()
            if x: s.l.append("    "+x)
    def label(s,n): s.l.append(n+":")
    def stamp(s,k):
        if s.c['stamps']: s(f"s_memrealtime s[{64+2*k}:{65+2*k}]")
    def vmreset(s,items=()): s.vm=list(items)
    def vmop(s,name,text): s(text); s.vm.append(name)
    def vmwait(s,name):
        k=len(s.vm)-1-s.vm.index(name)
        assert k<=63
        s(f"s_waitcnt vmcnt({k})")

def guard(g):
    g("s_add_u32 s96, s96, 1\ns_cmp_gt_u32 s96, 0x8000\ns_cbranch_scc1 L_fin")

def vr(a,n): return f"v[{a}:{a+n-1}]"

def rowreduce(g,op,v,steps=(8,4,2,1)):
    for r in steps: g(f"{op}_dpp v{v}, v{v}, v{v} row_ror:{r} row_mask:0xf bank_mask:0xf")

def wave_total(g,v,sdst):
    rowreduce(g,"v_add_f32",v)
    g(f"v_add_f32_dpp v{v}, v{v}, v{v} row_bcast:15 row_mask:0xa bank_mask:0xf")
    g(f"v_add_f32_dpp v{v}, v{v}, v{v} row_bcast:31 row_mask:0xc bank_mask:0xf")
    g(f"v_readlane_b32 s{sdst}, v{v}, 63")

def tagcheck(g,regs,acc):
    g(f"v_bitop3_b32 v{acc}, v{regs[0]}, v{regs[1]}, s46 bitop3:0x7e")
    for r in regs[2:]: g(f"v_bitop3_b32 v{acc}, v{acc}, v{r}, s46 bitop3:0xf6")
    g(f"v_cmp_ne_u32 vcc, 0, v{acc}")

SEL=8; AF=(16,20); ACC=24; XP=28; W2=64; RING=128

def afrag(g,dst,src,par):
    for d in range(4): g(f"v_perm_b32 v{dst+d}, v{src}, v{src}, v{SEL+4*par+d}")

def late_setup(g):
    g("s_load_dword s47, s[26:27], 0")
    g("s_mov_b64 s[40:41], s[26:27]")
    g("""s_cmp_lt_u32 s3, 2
    s_cselect_b64 s[36:37], s[12:13], s[20:21]
    s_cselect_b32 s50, 8, 7
    s_lshl_b32 s38, s50, 20
    s_lshl_b32 s51, s50, 15
    s_lshl_b32 s50, s50, 12
    s_lshl_b32 s52, s60, 1
    s_and_b32 s53, s3, 1
    s_add_u32 s59, s52, s53
    s_mul_i32 s49, s59, s51
    s_lshl_b32 s52, s61, 7
    s_add_u32 s49, s49, s52
    v_mul_lo_u32 v3, v4, s50
    v_lshl_add_u32 v3, v5, 4, v3""")
    g("""v_and_b32 v6, 1, v5
    v_cmp_eq_u32 vcc, 1, v6
    v_mov_b32 v6, 0x0c0c0100
    v_mov_b32 v7, 0x01000c0c
    v_cndmask_b32 v6, v6, v7, vcc
    v_mov_b32 v7, 0x0c0c0302
    v_mov_b32 v1, 0x03020c0c
    v_cndmask_b32 v7, v7, v1, vcc
    v_lshrrev_b32 v1, 1, v5
    v_mov_b32 v16, 0x0c0c0c0c""")
    for d in range(4):
        g(f"v_cmp_eq_u32 vcc, {d}, v1\nv_cndmask_b32 v{SEL+d}, v16, v6, vcc\nv_cndmask_b32 v{SEL+4+d}, v16, v7, vcc")

def mktag(g):
    g("s_mul_i32 s46, s47, 0x9e3779b1\ns_add_u32 s46, s46, 0x7f4a7c15")

def sec_load(g,k):
    nt=g.c['nt']
    off=" offset:2048" if k&1 else ""
    g.vmop(f"S{k}",f"buffer_load_dwordx4 {vr(W2+4*k,4)}, v3, s[36:39], s49 offen{off} {nt}")
    if k&1: g("s_addk_i32 s49, 0x1000")

def qgu(g,role):
    c=g.c; nt=c['nt']
    RS=8192 if role=="Q" else 7168
    g.label(f"L_{role}")
    g(f"""v_lshrrev_b32 v4, 3, v0
    v_and_b32 v5, 7, v0
    v_mul_u32_u24 v2, {RS*32}, v4
    v_lshl_add_u32 v2, v5, 4, v2
    v_lshlrev_b32 v6, 3, v0
    s_mul_i32 s48, s3, {RS*256}
    s_lshl_b32 s50, s45, 7
    s_add_u32 s48, s48, s50
    s_lshl_b32 s50, s3, 9
    s_add_u32 s51, s50, 512
    s_and_b32 s51, s51, 0x7ff
    s_xor_b32 s52, s50, 1024
    s_xor_b32 s53, s51, 1024
    s_mov_b32 s30, {RS*1024}
    s_movk_i32 s34, 0x800""")
    if role=="G": g("s_cmp_lt_u32 s44, 184")
    g("s_waitcnt lgkmcnt(0)")
    if role=="Q": g("s_mov_b64 s[28:29], s[10:11]")
    else: g("s_cselect_b64 s[28:29], s[16:17], s[18:19]")
    g("s_mov_b64 s[32:33], s[4:5]")
    g.vmreset()
    for k in range(4): g.vmop(f"X{k}",f"buffer_load_dwordx2 {vr(44+2*k,2)}, v6, s[32:35], s{50+k} offen")
    W = 32 if role=="Q" else 16
    nP=[0]; nS=[0]
    def issue():
        if nP[0]<32:
            i=nP[0]; g.vmop(f"P{i}",f"buffer_load_dwordx4 {vr(RING+4*(i%W),4)}, v2, s[28:31], s48 offen {nt}")
            if i<31: g(f"s_addk_i32 s48, {RS}")
            nP[0]+=1
        elif role!="Q" and nS[0]<c['D2']:
            sec_load(g,nS[0]); nS[0]+=1
    if role=="Q": D=lambda i:c['DQ']
    else: D=lambda i:(c['DG0'] if i<c['DGs'] else c['DG1'])
    for _ in range(D(0)): issue()
    g.stamp(1)
    late_setup(g)
    g.vmwait("X3")
    for k in range(8):
        g(f"v_lshlrev_b32 v{64+2*k}, 16, v{44+k}\nv_and_b32 v{65+2*k}, 0xffff0000, v{44+k}")
    g("v_pk_add_f32 v[80:81], v[64:65], v[66:67]")
    for k in range(2,8): g(f"v_pk_add_f32 v[80:81], v[80:81], {vr(64+2*k,2)}")
    g("v_add_f32 v80, v80, v81")
    wave_total(g,80,50)
    g("v_mov_b32 v82, 0x3a800000\nv_mul_f32 v82, s50, v82")
    for k in range(8): g(f"v_pk_add_f32 {vr(84+2*k,2)}, {vr(64+2*k,2)}, v[82:83] op_sel_hi:[1,0] neg_lo:[0,1] neg_hi:[0,1]")
    g("v_pk_mul_f32 v[80:81], v[84:85], v[84:85]")
    for k in range(1,8): g(f"v_pk_fma_f32 v[80:81], {vr(84+2*k,2)}, {vr(84+2*k,2)}, v[80:81]")
    g("v_add_f32 v80, v80, v81")
    g("v_cvt_pk_bf16_f32 v82, v82, v82\nv_lshlrev_b32 v82, 16, v82")
    wave_total(g,80,50)
    g("""v_mov_b32 v80, 0x3a800000
    v_mul_f32 v80, s50, v80
    v_pk_add_f32 v[64:65], v[64:65], v[82:83] op_sel_hi:[1,0] neg_lo:[0,1] neg_hi:[0,1]
    v_pk_add_f32 v[66:67], v[66:67], v[82:83] op_sel_hi:[1,0] neg_lo:[0,1] neg_hi:[0,1]
    v_cvt_pk_bf16_f32 v80, v80, v80
    v_lshlrev_b32 v80, 16, v80
    v_add_f32 v80, 0x3727c5ac, v80
    v_cvt_pk_bf16_f32 v80, v80, v80
    v_lshlrev_b32 v80, 16, v80
    v_sqrt_f32 v80, v80
    v_cvt_pk_bf16_f32 v64, v64, v65
    v_cvt_pk_bf16_f32 v66, v66, v67
    v_cvt_pk_bf16_f32 v80, v80, v80
    v_lshlrev_b32 v80, 16, v80
    v_rcp_f32 v80, v80
    v_and_b32 v65, 0xffff0000, v64
    v_lshlrev_b32 v64, 16, v64
    v_and_b32 v67, 0xffff0000, v66
    v_lshlrev_b32 v66, 16, v66
    v_pk_mul_f32 v[64:65], v[64:65], v[80:81] op_sel_hi:[1,0]
    v_pk_mul_f32 v[66:67], v[66:67], v[80:81] op_sel_hi:[1,0]
    s_lshl_b32 s50, s3, 9
    v_lshl_add_u32 v6, v0, 3, s50
    v_lshl_add_u32 v7, v4, 6, s50
    v_cvt_pk_bf16_f32 v64, v64, v65
    v_cvt_pk_bf16_f32 v65, v66, v67""")
    g(f"ds_write_b64 v6, v[64:65] offset:{XN}\ns_waitcnt lgkmcnt(0)")
    for k in range(4): g(f"ds_read_b128 {vr(XP+4*k,4)}, v7 offset:{XN+16*k}")
    mktag(g)
    g("s_waitcnt lgkmcnt(0)")
    g.stamp(2)
    afrag(g,AF[0],XP,0)
    for i in range(32):
        g.vmwait(f"P{i}")
        C = "0" if i==0 else vr(ACC,4)
        g(f"v_mfma_f32_16x16x32_bf16 {vr(ACC,4)}, {vr(AF[i&1],4)}, {vr(RING+4*(i%W),4)}, {C}")
        if i<31: afrag(g,AF[(i+1)&1],XP+((i+1)>>1),(i+1)&1)
        while (nP[0]+nS[0])-(i+1) < D(i+1) and (nP[0]<32 or (role!="Q" and nS[0]<c['D2'])) and (nP[0]>=32 or nP[0]-(i+1)<W):
            issue()
    if role!="Q":
        while nS[0]<c['D2']: issue()
    g.stamp(3)
    g(f"""s_lshl_b32 s50, s3, 10
    v_lshl_add_u32 v6, v0, 4, s50
    ds_write_b128 v6, {vr(ACC,4)} offset:{EX}
    s_waitcnt lgkmcnt(0)
    s_barrier""")
    if role=="Q":
        g("s_barrier\ns_branch L_SEC0")
    else:
        g("s_branch L_SEC1")

def attn(g):
    c=g.c; nt=c['nt']
    g.label("L_A")
    g("""v_lshrrev_b32 v4, 4, v0
    v_and_b32 v5, 15, v0
    v_lshlrev_b32 v6, 8, v4""")
    for b in range(4):
        g(f"v_add_u32 v7, {4*b}, v4\nv_xor_b32 v7, v7, v5\nv_lshl_add_u32 v{44+b}, v7, 4, v6")
    for b in range(2):
        g(f"v_add_u32 v7, {4*b}, v4\nv_lshlrev_b32 v7, 1, v7\nv_xor_b32 v7, v7, v5\nv_lshl_add_u32 v{48+b}, v7, 4, v6")
    g(f"""s_lshr_b32 s54, s45, 4
    s_and_b32 s55, s45, 15
    s_lshl_b32 s48, s54, 24
    s_lshl_b32 s50, s55, 16
    s_add_u32 s48, s48, s50
    s_lshl_b32 s58, s3, 14
    s_add_u32 s48, s48, s58
    s_add_u32 s48, s48, {15*MB}
    s_mov_b32 s56, s48
    s_mov_b32 m0, s58
    s_mov_b32 s30, {64*MB}
    s_mov_b32 s34, {64*MB}
    s_waitcnt lgkmcnt(0)
    s_mov_b64 s[28:29], s[6:7]
    s_mov_b64 s[32:33], s[8:9]""")
    g.vmreset()
    D=lambda i:(c['DA0'] if i<c['DAs'] else c['DA1'])
    done=-1
    for i in range(32):
        if i-D(i)>done:
            done=i-D(i); g.vmwait(f"P{done}")
        b=i&3
        off=f" offset:{b*1024}" if b else ""
        if i<16: g.vmop(f"P{i}",f"buffer_load_dwordx4 v{44+b}, s[28:31], s48 offen{off} {nt} lds")
        else:    g.vmop(f"P{i}",f"buffer_load_dwordx4 v{48+(b&1)}, s[32:35], s56 offen{off} {nt} lds")
        if b==3 and i<31:
            if i==15: g(f"s_add_u32 m0, s58, {VB}")
            else:
                g("s_addk_i32 m0, 0x1000")
                g(f"s_addk_i32 s{48 if i<16 else 56}, 0x1000")
        if i==min(D(0),32)-1:
            g.stamp(1)
            g(f"v_lshlrev_b32 v6, 8, v5\nv_add_u32 v6, s58, v6")
            for s_ in range(4):
                g(f"v_add_u32 v7, {4*s_}, v4\nv_xor_b32 v7, v7, v5\nv_lshl_add_u32 v{50+s_}, v7, 4, v6")
            g(f"""v_lshrrev_b32 v6, 2, v5
            v_lshl_add_u32 v6, v4, 2, v6
            v_and_b32 v7, 7, v6
            v_lshlrev_b32 v7, 1, v7
            v_bfe_u32 v16, v5, 1, 1
            s_lshl_b32 s51, s3, 2
            v_add_u32 v16, s51, v16
            v_and_b32 v17, 1, v5
            v_lshlrev_b32 v17, 3, v17
            v_lshl_add_u32 v17, v6, 8, v17
            v_add_u32 v17, {VB}, v17
            v_xor_b32 v18, v16, v7
            v_lshl_add_u32 v54, v18, 4, v17
            v_add_u32 v16, 2, v16
            v_xor_b32 v18, v16, v7
            v_lshl_add_u32 v55, v18, 4, v17
            v_and_b32 v7, 7, v5
            v_lshlrev_b32 v56, 9, v7
            v_lshl_add_u32 v56, v4, 5, v56
            v_lshl_add_u32 v57, v4, 4, v7
            v_lshlrev_b32 v57, 4, v57
            v_lshlrev_b32 v58, 5, v7
            v_lshlrev_b32 v59, 14, v7
            v_lshl_add_u32 v59, v4, 5, v59
            v_bfe_u32 v16, v5, 3, 1
            v_lshl_add_u32 v59, v16, 7, v59
            v_lshlrev_b32 v60, 8, v7
            v_lshrrev_b32 v4, 3, v0
            v_and_b32 v5, 7, v0""")
            g(f"s_lshl_b32 s57, s54, 12\ns_add_u32 s57, s57, {QS}")
            late_setup(g)
    QR=128; QC=160; KF=64; VF=176; S=28; T=240
    def qloads():
        for s_ in range(4):
            for h in range(2):
                g.vmop(f"q{s_}{h}",f"buffer_load_dwordx4 {vr(QR+8*s_+4*h,4)}, v56, s[40:43], s57 offen offset:{128*s_+16*h} sc1")
    qloads()
    g.vmwait("P31")
    g("s_waitcnt lgkmcnt(0)")
    mktag(g)
    g("s_barrier")
    g.stamp(2)
    for kb in range(4):
        for s_ in range(4): g(f"ds_read_b128 {vr(KF+16*kb+4*s_,4)}, v{50+s_} offset:{kb*4096}")
    for w in range(4):
        for sel in range(2):
            for db in range(2):
                for y in range(2):
                    g(f"ds_read_b64_tr_b16 {vr(VF+16*w+8*sel+4*db+2*y,2)}, v{54+db} offset:{(64*w+16*(2*sel+y))*256}")
    g("s_branch L_Aq1")
    g.label("L_Aq0")
    guard(g)
    if c['slq']: g(f"s_sleep {c['slq']}")
    qloads()
    g.label("L_Aq1")
    g("s_waitcnt vmcnt(0)")
    tagcheck(g,[QR+2*k+1 for k in range(16)],6)
    g("s_cbranch_vccnz L_Aq0")
    g.stamp(3)
    for k in range(16): g(f"v_mov_b32 v{QC+k}, v{QR+2*k}")
    g("s_waitcnt lgkmcnt(0)")
    for s_ in range(4):
        for kb in range(4):
            C="0" if s_==0 else vr(S+4*kb,4)
            g(f"v_mfma_f32_16x16x32_bf16 {vr(S+4*kb,4)}, {vr(KF+16*kb+4*s_,4)}, {vr(QC+4*s_,4)}, {C}")
    g("s_mov_b32 s62, 0xff00ff00\ns_mov_b32 s63, 0xff00ff00\ns_mov_b32 s50, 0x3db504f3\ns_mov_b32 s51, 0x3fb8aa3b")
    for k in range(8): g(f"v_cndmask_b32 v{T+k}, v{S+k}, v{S+8+k}, s[62:63]")
    for k in range(4): g(f"v_cvt_pk_bf16_f32 v{S+k}, v{T+2*k}, v{T+2*k+1}")
    for k in range(4): g(f"v_lshlrev_b32 v{T+2*k}, 16, v{S+k}\nv_and_b32 v{T+2*k+1}, 0xffff0000, v{S+k}")
    for k in range(8): g(f"v_mul_f32 v{T+k}, s50, v{T+k}")
    for k in range(4): g(f"v_cvt_pk_bf16_f32 v{S+k}, v{T+2*k}, v{T+2*k+1}")
    for k in range(4): g(f"v_lshlrev_b32 v{T+2*k}, 16, v{S+k}\nv_and_b32 v{T+2*k+1}, 0xffff0000, v{S+k}")
    g(f"""v_max3_f32 v6, v{T}, v{T+1}, v{T+2}
    v_max3_f32 v7, v{T+3}, v{T+4}, v{T+5}
    v_max3_f32 v6, v6, v{T+6}, v{T+7}
    v_max_f32 v6, v6, v7""")
    def xrow(op,v,t):
        g(f"{op}_dpp v{v}, v{v}, v{v} row_ror:8 row_mask:0xf bank_mask:0xf")
        g(f"v_mov_b32 v{t}, v{v}\nv_permlane16_swap_b32 v{v}, v{t}\n{op} v{v}, v{v}, v{t}")
        g(f"v_mov_b32 v{t}, v{v}\nv_permlane32_swap_b32 v{v}, v{t}\n{op} v{v}, v{v}, v{t}")
    xrow("v_max_f32",6,7)
    g("v_mul_f32 v6, s51, v6")
    for k in range(8): g(f"v_fma_f32 v{T+k}, v{T+k}, s51, -v6")
    for k in range(8): g(f"v_exp_f32 v{T+k}, v{T+k}")
    for k in range(4): g(f"v_cvt_pk_bf16_f32 v{S+k}, v{T+2*k}, v{T+2*k+1}")
    g(f"""s_lshl_b32 s50, s3, 10
    s_add_u32 s50, s50, {PB}
    v_lshl_add_u32 v16, v0, 4, s50
    ds_write_b128 v16, {vr(S,4)}""")
    g(f"""v_pk_add_f32 {vr(T,2)}, {vr(T,2)}, {vr(T+2,2)}
    v_pk_add_f32 {vr(T+4,2)}, {vr(T+4,2)}, {vr(T+6,2)}
    v_pk_add_f32 {vr(T,2)}, {vr(T,2)}, {vr(T+4,2)}
    v_add_f32 v7, v{T}, v{T+1}""")
    xrow("v_add_f32",7,17)
    g(f"""s_lshl_b32 s50, s3, 3
    s_add_u32 s50, s50, {SB}
    v_add_u32 v16, s50, v58
    ds_write_b64 v16, v[6:7]
    v_add_u32 v57, {PB}, v57
    v_add_u32 v58, {SB}, v58
    s_waitcnt lgkmcnt(0)
    s_barrier""")
    PR=96; PA=64
    g(f"ds_read_b128 {vr(T,4)}, v58\nds_read_b128 {vr(T+4,4)}, v58 offset:16")
    for w in range(4):
        for sel in range(2): g(f"ds_read_b128 {vr(PR+8*w+4*sel,4)}, v57 offset:{w*1024+sel*128}")
    g("s_waitcnt lgkmcnt(0)")
    for sel in range(2):
        for w in range(4):
            for db in range(2):
                C="0" if sel==0 else vr(PA+8*w+4*db,4)
                g(f"v_mfma_f32_16x16x32_bf16 {vr(PA+8*w+4*db,4)}, {vr(VF+16*w+8*sel+4*db,4)}, {vr(PR+8*w+4*sel,4)}, {C}")
    g(f"""v_max3_f32 v6, v{T}, v{T+2}, v{T+4}
    v_max_f32 v6, v6, v{T+6}""")
    for w in range(4): g(f"v_sub_f32 v{T+2*w}, v{T+2*w}, v6")
    for w in range(4): g(f"v_exp_f32 v{T+2*w}, v{T+2*w}")
    g(f"v_mov_b32 v17, s46\nv_mov_b32 v19, s46\nv_mov_b32 v21, s46\nv_mov_b32 v23, s46\nv_mov_b32 v25, s46\nv_mov_b32 v27, s46\nv_mov_b32 v24, v6")
    g(f"v_mul_f32 v26, v{T}, v{T+1}")
    for w in range(1,4): g(f"v_fmac_f32 v26, v{T+2*w}, v{T+2*w+1}")
    for k in range(8): g(f"v_mul_f32 v{28+k}, v{T}, v{PA+k}")
    for w in range(1,4):
        for k in range(8): g(f"v_fmac_f32 v{28+k}, v{T+2*w}, v{PA+8*w+k}")
    for k in range(4): g(f"v_mov_b32_dpp v{28+k}, v{32+k} row_ror:8 row_mask:0xf bank_mask:0xc")
    g(f"""s_lshl_b32 s50, s54, 17
    s_lshl_b32 s51, s55, 9
    s_add_u32 s50, s50, s51
    s_lshr_b32 s51, s3, 1
    s_lshl_b32 s51, s51, 13
    s_add_u32 s50, s50, s51
    s_and_b32 s51, s3, 1
    s_lshl_b32 s51, s51, 8
    s_add_u32 s50, s50, s51
    s_add_u32 s50, s50, {PART}
    v_mov_b32 v16, v28
    v_mov_b32 v18, v29
    v_mov_b32 v20, v30
    v_mov_b32 v22, v31
    buffer_store_dwordx4 v[16:19], v59, s[40:43], s50 offen sc1
    buffer_store_dwordx4 v[20:23], v59, s[40:43], s50 offen offset:16 sc1
    s_cmp_lg_u32 s3, 0
    s_cbranch_scc1 L_A9
    s_lshl_b32 s50, s54, 11
    s_lshl_b32 s51, s55, 4
    s_add_u32 s50, s50, s51
    s_add_u32 s50, s50, {ST}
    s_mov_b64 exec, 0xff
    buffer_store_dwordx4 v[24:27], v60, s[40:43], s50 offen sc1
    s_mov_b64 exec, -1""")
    g.label("L_A9")
    g.stamp(4)
    g("s_branch L_SEC0")

def light(g):
    g.label("L_L")
    g("v_lshrrev_b32 v4, 3, v0\nv_and_b32 v5, 7, v0\ns_waitcnt lgkmcnt(0)")
    late_setup(g)
    g("s_waitcnt lgkmcnt(0)")
    mktag(g)
    g("s_barrier")

def secondary(g):
    c=g.c; D2=c['D2']
    g.label("L_SEC0")
    g.vmreset()
    for k in range(D2): sec_load(g,k)
    g.label("L_SEC1")
    base=list(g.vm)
    g.stamp(5)
    g(f"""v_lshrrev_b32 v6, 4, v0
    v_and_b32 v7, 1, v6
    v_lshl_add_u32 v7, v5, 1, v7
    v_lshlrev_b32 v7, 10, v7
    v_lshrrev_b32 v6, 1, v6
    v_lshl_add_u32 v61, v6, 4, v7
    s_lshl_b32 s58, s61, 14
    s_lshl_b32 s50, s59, 5
    s_add_u32 s58, s58, s50
    s_cmp_lt_u32 s3, 2
    s_cbranch_scc0 L_DOWN""")
    for kind,N,KP in (("W",16,c['KPW']),("D",14,c['KPD'])):
        g.vmreset(base)
        if kind=="W":
            g(f"s_add_u32 s58, s58, {FS}\ns_lshl_b32 s57, s59, 9\ns_add_u32 s57, s57, {OS}\nv_lshlrev_b32 v62, 6, v4")
            def polls():
                for k in range(4): g.vmop(f"o{k}",f"buffer_load_dwordx4 {vr(XP+4*k,4)}, v62, s[40:43], s57 offen offset:{16*k} sc1")
            last="o3"; tags=[XP+2*k+1 for k in range(8)]
        else:
            g.label("L_DOWN")
            g(f"""s_add_u32 s58, s58, {FY}
            s_mul_i32 s57, s59, 448
            s_add_u32 s56, s57, {US}
            s_add_u32 s57, s57, {GS}
            v_min_u32 v62, 55, v0
            v_lshrrev_b32 v62, 1, v62
            v_lshlrev_b32 v62, 4, v62
            v_mul_u32_u24 v63, 28, v4""")
            def polls():
                g.vmop("o0",f"buffer_load_dwordx4 {vr(XP,4)}, v62, s[40:43], s57 offen sc1")
                g.vmop("o1",f"buffer_load_dwordx4 {vr(XP+4,4)}, v62, s[40:43], s56 offen sc1")
            last="o1"; tags=[XP+1,XP+3,XP+5,XP+7]
        for k in range(D2,N):
            if k==KP: polls()
            g.vmwait(f"S{k-D2}")
            sec_load(g,k)
        if KP>=N: polls()
        g.vmwait(last)
        g(f"s_branch L_{kind}p1")
        g.label(f"L_{kind}p0")
        save=list(g.vm)
        guard(g)
        if c['sls']: g(f"s_sleep {c['sls']}")
        polls()
        g("s_waitcnt vmcnt(0)")
        g.vm=save
        g.label(f"L_{kind}p1")
        tagcheck(g,tags,6)
        g(f"s_cbranch_vccnz L_{kind}p0")
        g.stamp(6)
        if kind=="W":
            src=lambda i:XP+2*(i>>1)
        else:
            g(f"""v_and_b32 v6, 1, v0
            v_cmp_eq_u32 vcc, 1, v6
            s_mov_b32 s50, 0x3d372713
            s_mov_b32 s51, 0xc0135761
            v_cndmask_b32 v6, v{XP}, v{XP+2}, vcc
            v_cndmask_b32 v7, v{XP+4}, v{XP+6}, vcc
            v_lshlrev_b32 v16, 16, v6
            v_and_b32 v17, 0xffff0000, v6
            v_pk_mul_f32 v[18:19], v[16:17], v[16:17]
            v_fma_f32 v18, v18, s50, 1.0
            v_fma_f32 v19, v19, s50, 1.0
            v_pk_mul_f32 v[18:19], v[18:19], v[16:17]
            v_mul_f32 v18, s51, v18
            v_mul_f32 v19, s51, v19
            v_exp_f32 v18, v18
            v_exp_f32 v19, v19
            v_lshlrev_b32 v20, 16, v7
            v_add_f32 v18, 1.0, v18
            v_add_f32 v19, 1.0, v19
            v_rcp_f32 v18, v18
            v_rcp_f32 v19, v19
            v_and_b32 v21, 0xffff0000, v7
            v_pk_mul_f32 v[18:19], v[18:19], v[16:17]
            v_cvt_pk_bf16_f32 v18, v18, v19
            v_and_b32 v19, 0xffff0000, v18
            v_lshlrev_b32 v18, 16, v18
            v_pk_mul_f32 v[18:19], v[18:19], v[20:21]
            v_cvt_pk_bf16_f32 v18, v18, v19""")
            for k in range(7): g(f"ds_bpermute_b32 v{XP+8+k}, v63, v18 offset:{4*k}")
            g("s_waitcnt lgkmcnt(0)")
            src=lambda i:XP+8+(i>>1)
        afrag(g,AF[0],src(0),0)
        for i in range(N):
            if g.vm.index(f"S{i}")>g.vm.index(last): g.vmwait(f"S{i}")
            C="0" if i==0 else vr(ACC,4)
            g(f"v_mfma_f32_16x16x32_bf16 {vr(ACC,4)}, {vr(AF[i&1],4)}, {vr(W2+4*i,4)}, {C}")
            if i<N-1: afrag(g,AF[(i+1)&1],src(i+1),(i+1)&1)
        if kind=="W": g("s_branch L_PUB")
    g.label("L_PUB")
    g(f"""v_mov_b32 v5, s46
    v_mov_b32 v7, s46
    s_mov_b32 s62, 0x00ff00ff
    s_mov_b32 s63, 0x00ff00ff
    v_permlane32_swap_b32 v{ACC}, v{ACC+2}
    v_permlane32_swap_b32 v{ACC+1}, v{ACC+3}
    v_add_f32_dpp v4, v{ACC+2}, v{ACC} row_ror:8 row_mask:0xf bank_mask:0xf
    v_add_f32_dpp v6, v{ACC+3}, v{ACC+1} row_ror:8 row_mask:0xf bank_mask:0xf
    s_mov_b64 exec, s[62:63]
    buffer_store_dwordx4 v[4:7], v61, s[40:43], s58 offen sc1
    s_barrier""")
    g.stamp(7)
    g("s_branch L_fin")

def comm(g):
    c=g.c
    g.label("L_COMM")
    g(f"""v_lshrrev_b32 v4, 4, v0
    v_and_b32 v4, 1, v4
    v_and_b32 v5, 1, v0
    v_lshlrev_b32 v5, 2, v5
    v_lshl_add_u32 v2, v4, 1, v5
    s_lshl_b32 s48, s44, 3
    s_movk_i32 s34, 0x800
    s_movk_i32 s38, 0x800
    v_mov_b32 v3, 0
    s_waitcnt lgkmcnt(0)
    s_load_dword s47, s[26:27], 0
    s_mov_b64 s[32:33], s[4:5]
    s_mov_b64 s[36:37], s[22:23]
    s_mov_b64 s[40:41], s[26:27]
    buffer_load_short_d16_hi v3, v2, s[32:35], s48 offen
    v_lshrrev_b32 v4, 2, v0
    v_and_b32 v4, 7, v4
    v_bfe_u32 v5, v0, 1, 1
    v_lshl_add_u32 v4, v5, 4, v4
    v_lshlrev_b32 v4, 4, v4
    v_and_b32 v5, 1, v0
    v_lshl_add_u32 v8, v5, 3, v4
    v_lshlrev_b32 v9, 3, v0
    v_lshlrev_b32 v10, 4, v0
    s_waitcnt lgkmcnt(0)""")
    mktag(g)
    g("""v_mov_b32 v7, s46
    s_barrier
    s_cmp_lt_u32 s44, 64
    s_cbranch_scc1 L_Cq
    s_cmp_lt_u32 s44, 128
    s_cbranch_scc1 L_Cb2
    s_cmp_lt_u32 s44, 240
    s_cbranch_scc0 L_Cfin""")
    g.label("L_Cq")
    for w in range(4):
        for h in range(2): g(f"ds_read_b64 {vr(16+4*w+2*h,2)}, v8 offset:{EX+w*1024+h*640}")
    g(f"""s_mov_b32 s50, {US}
    s_cmp_lt_u32 s44, 184
    s_cselect_b32 s50, {GS}, s50
    s_cmp_lt_u32 s44, 64
    s_cselect_b32 s50, {QS}, s50
    s_lshl_b32 s51, s45, 8
    s_add_u32 s50, s50, s51
    s_waitcnt lgkmcnt(0)
    v_pk_add_f32 v[16:17], v[16:17], v[18:19]
    v_pk_add_f32 v[20:21], v[20:21], v[22:23]
    v_pk_add_f32 v[24:25], v[24:25], v[26:27]
    v_pk_add_f32 v[28:29], v[28:29], v[30:31]
    v_pk_add_f32 v[16:17], v[16:17], v[20:21]
    v_pk_add_f32 v[24:25], v[24:25], v[28:29]
    v_pk_add_f32 v[16:17], v[16:17], v[24:25]
    v_cvt_pk_bf16_f32 v6, v16, v17
    s_mov_b32 exec_hi, 0
    buffer_store_dwordx2 v[6:7], v9, s[40:43], s50 offen sc1
    s_mov_b64 exec, -1""")
    g.stamp(1)
    g("s_cmp_lt_u32 s44, 64\ns_cbranch_scc0 L_Cfin")
    if not c['qgate']: g("s_barrier")
    g(f"""v_and_b32 v11, 15, v0
    v_lshrrev_b32 v12, 5, v0
    v_xor_b32 v11, v11, v12
    v_lshlrev_b32 v11, 4, v11
    s_lshr_b32 s52, s45, 1
    s_lshl_b32 s52, s52, 8
    s_add_u32 s52, s52, {ST}
    s_lshl_b32 s53, s45, 13
    s_add_u32 s53, s53, {PART}
    s_add_u32 s54, s53, 0x1000
    s_lshl_b32 s55, s45, 8
    s_add_u32 s55, s55, {OS}""")
    g.label("L_Cc0")
    guard(g)
    if c['slc']: g(f"s_sleep {c['slc']}")
    g("buffer_load_dwordx4 v[12:15], v11, s[40:43], s52 offen sc1")
    for i in range(8): g(f"buffer_load_dwordx4 {vr(16+4*i,4)}, v10, s[40:43], s{53+(i>>2)} offen offset:{(i&3)*1024} sc1")
    g("s_waitcnt vmcnt(0)")
    tagcheck(g,[13+2*k for k in range(18)],6)
    g("s_cbranch_vccnz L_Cc0")
    g.stamp(2)
    g("v_mov_b32 v4, v12")
    rowreduce(g,"v_max_f32",4)
    g("v_sub_f32 v4, v12, v4\nv_exp_f32 v4, v4\nv_mul_f32 v5, v4, v14")
    rowreduce(g,"v_add_f32",5)
    g("v_rcp_f32 v5, v5\nv_mul_f32 v4, v4, v5")
    for i in range(8):
        op="v_mul_f32_dpp" if i==0 else "v_fmac_f32_dpp"
        g(f"{op} v12, v4, v{16+4*i} row_newbcast:{2*i} row_mask:0xf bank_mask:0xf")
        g(f"{op} v13, v4, v{18+4*i} row_newbcast:{2*i} row_mask:0xf bank_mask:0xf")
    g("""v_mov_b32 v14, v12
    v_mov_b32 v15, v13
    v_permlane32_swap_b32 v12, v14
    v_permlane32_swap_b32 v13, v15
    v_pk_add_f32 v[12:13], v[12:13], v[14:15]
    v_cvt_pk_bf16_f32 v6, v12, v13
    s_mov_b32 exec_hi, 0
    buffer_store_dwordx2 v[6:7], v9, s[40:43], s55 offen sc1
    s_mov_b64 exec, -1""")
    g.stamp(3)
    if not c['qgate']: g("s_branch L_Cfin")
    g.label("L_Cb2")
    g("s_barrier")
    g.label("L_Cfin")
    g(f"""s_lshl_b32 s50, s44, 10
    s_add_u32 s51, s50, {FY}
    s_add_u32 s50, s50, {FS}
    s_mov_b32 s52, 0xbfb8aa3b
    s_barrier""")
    g.stamp(4)
    g.label("L_Cf0")
    guard(g)
    if c['slf']: g(f"s_sleep {c['slf']}")
    g("""buffer_load_dwordx4 v[12:15], v10, s[40:43], s51 offen sc1
    buffer_load_dwordx4 v[16:19], v10, s[40:43], s50 offen sc1
    s_waitcnt vmcnt(0)""")
    tagcheck(g,[13,15,17,19],6)
    g("s_cbranch_vccnz L_Cf0")
    g.stamp(5)
    for _ in range(c.get('padkb',0)*128): g("s_mov_b32 s97, 0x12345678")
    g("""v_permlane32_swap_b32 v12, v16
    v_permlane32_swap_b32 v14, v18
    v_add_f32 v12, v12, v16
    v_add_f32 v14, v14, v18
    v_permlane16_swap_b32 v12, v14
    v_add_f32 v12, v12, v14""")
    rowreduce(g,"v_add_f32",12,(8,4,2))
    g("""v_cvt_pk_bf16_f32 v12, v12, v12
    v_lshlrev_b32 v12, 16, v12
    v_mul_f32 v13, s52, v12
    v_mov_b32 v14, v12
    v_exp_f32 v13, v13
    v_permlane32_swap_b32 v12, v14
    v_add_f32 v13, 1.0, v13
    v_rcp_f32 v13, v13
    s_mov_b32 s62, 0x00030003
    s_mov_b32 s63, 0
    v_mul_f32 v13, v13, v12
    v_cvt_pk_bf16_f32 v13, v13, v13
    v_lshlrev_b32 v13, 16, v13
    v_mul_f32 v13, v13, v14
    v_cvt_pk_bf16_f32 v13, v13, v13
    v_lshlrev_b32 v13, 16, v13
    v_add_f32 v13, v13, v3
    v_cvt_pk_bf16_f32 v13, v13, v13
    s_mov_b64 exec, s[62:63]
    buffer_store_short v13, v2, s[36:39], s48 offen sc1
    s_cmp_lg_u32 s44, 0
    s_cbranch_scc1 L_Cend
    s_mov_b64 exec, 1
    v_mov_b32 v4, 0
    buffer_store_dword v7, v4, s[40:43], 0 offen sc1""")
    g.label("L_Cend")
    g.stamp(6)

def build(cfg):
    g=G(cfg); c=g.c
    g.stamp(0)
    g("""s_load_dwordx16 s[4:19], s[0:1], 0
    s_load_dwordx8 s[20:27], s[0:1], 64
    v_lshrrev_b32 v1, 6, v0
    s_cmp_ge_u32 s2, 256
    s_cbranch_scc1 L_end
    v_readfirstlane_b32 s3, v1
    v_and_b32 v0, 63, v0""")
    if c['stamps']:
        for k in range(1,8): g(f"s_mov_b32 s{64+2*k}, 0")
    if c['mapq']:
        g("""s_and_b32 s50, s2, 4
        s_lshl_b32 s50, s50, 4
        s_lshr_b32 s51, s2, 3
        s_lshl_b32 s51, s51, 2
        s_or_b32 s50, s50, s51
        s_and_b32 s51, s2, 3
        s_or_b32 s50, s50, s51
        s_cmp_lt_u32 s2, 128
        s_cselect_b32 s44, s50, s2""")
    else: g("s_mov_b32 s44, s2")
    g(f"""s_mov_b32 s31, 0x20000
    s_mov_b32 s35, 0x20000
    s_mov_b32 s96, 0
    s_mov_b32 s39, 0x20000
    s_mov_b32 s43, 0x20000
    s_mov_b32 s42, {256*MB if c['stamps'] else WS_USED}
    s_add_u32 s50, s44, 16
    s_and_b32 s60, s50, 15
    s_bfe_u32 s61, s50, 0x40004
    s_and_b32 s45, s44, 63
    s_sub_u32 s50, s44, 184
    s_cmp_lt_u32 s44, 184
    s_cselect_b32 s45, s45, s50
    s_cmp_eq_u32 s3, 4
    s_cbranch_scc1 L_COMM
    s_cmp_lt_u32 s44, 64
    s_cbranch_scc1 L_Q
    s_cmp_lt_u32 s44, 128
    s_cbranch_scc1 L_A
    s_cmp_lt_u32 s44, 240
    s_cbranch_scc0 L_L""")
    qgu(g,"G")
    qgu(g,"Q")
    attn(g)
    light(g)
    secondary(g)
    comm(g)
    g.label("L_fin")
    if c['stamps']:
        g("s_mov_b64 exec, -1\ns_getreg_b32 s92, hwreg(HW_REG_XCC_ID)\ns_waitcnt lgkmcnt(0)\nv_mov_b32 v3, 0")
        for k in range(8): g(f"v_writelane_b32 v3, s{64+2*k}, {k}")
        g(f"""v_writelane_b32 v3, s92, 8
        v_writelane_b32 v3, s44, 9
        v_writelane_b32 v3, s96, 10
        s_mul_i32 s50, s2, 5
        s_add_u32 s50, s50, s3
        s_lshl_b32 s50, s50, 6
        s_add_u32 s50, s50, {STAMP}
        v_lshlrev_b32 v2, 2, v0
        s_mov_b64 exec, 0xffff
        buffer_store_dword v3, v2, s[40:43], s50 offen""")
    g.label("L_end")
    g("s_endpgm")
    lines,added=hazard.pad(g.l)
    k=KNAME+"_kernel"
    hdr=open("cdna_kernels/"+KNAME+".s.ref").read().split("; Override")[0] if cfg.get('hdr',1) else ""
    txt=f"""{hdr}; Single persistent launch, one 5-wave workgroup per CU; generated by my own generator (dev/gen.py).
; config: {json.dumps(c)}
; @launch grid=(256,1,1) block=(320,1,1) lds={LDS_BYTES}
.amdgcn_target "amdgcn-amd-amdhsa--gfx950"
.text
.globl {k}
.p2align 8
.type {k},@function
{k}:
""" + "\n".join(lines) + f"""
.section .rodata,"a"
.p2align 6
.amdhsa_kernel {k}
  .amdhsa_next_free_vgpr 256
  .amdhsa_next_free_sgpr 102
  .amdhsa_accum_offset 256
  .amdhsa_group_segment_fixed_size 0
  .amdhsa_kernarg_size 96
  .amdhsa_user_sgpr_count 2
  .amdhsa_user_sgpr_kernarg_segment_ptr 1
  .amdhsa_system_sgpr_workgroup_id_x 1
.end_amdhsa_kernel
"""
    return txt
if __name__=="__main__":
    out=sys.argv[1]; cfg={}
    for a in sys.argv[2:]:
        k,v=a.split("="); cfg[k]=v if k=="nt" else int(v)
    open(out,"w").write(build(cfg))
```

```python
import re
TRANS=("v_exp_f32","v_log_f32","v_rcp_f32","v_rsq_f32","v_sqrt_f32","v_sin_f32","v_cos_f32")
def regs_of(tok):
    tok=tok.strip()
    tok=re.sub(r"^-|^abs\(|\)$|^\|","",tok).strip("|")
    m=re.fullmatch(r"([vsa])\[(\d+):(\d+)\]",tok)
    if m: return {(m.group(1),i) for i in range(int(m.group(2)),int(m.group(3))+1)}
    m=re.fullmatch(r"([vsa])(\d+)",tok)
    if m: return {(m.group(1),int(m.group(2)))}
    if tok=="vcc": return {("s","vcc")}
    if tok in("vcc_lo","vcc_hi"): return {("s","vcc")}
    if tok=="m0": return {("s","m0")}
    if tok in("exec","exec_lo","exec_hi"): return {("s","exec")}
    return set()
class I:
    def __init__(s,line):
        s.line=line; t=line.split(";")[0].strip()
        s.label = t.endswith(":")
        s.dir = t.startswith(".") or t==""
        s.op=""; s.w=set(); s.r=set(); s.cls=""; s.A=set(); s.B=set(); s.C=set(); s.target=None
        s.dpp=False; s.mask=set(); s.sdata=set()
        if s.label or s.dir: return
        p=t.split(None,1); s.op=op=p[0]
        rest=p[1] if len(p)>1 else ""
        mods=""
        m=re.search(r"\s(op_sel|op_sel_hi|neg_lo|neg_hi|row_|quad_perm|wave_|offen|idxen|offset|sc0|sc1|nt\b|lds\b|glc|bitop3|dst_sel|src0_sel|clamp|bank_mask|off\b)",rest)
        if m: mods=rest[m.start():].strip(); rest=rest[:m.start()]
        ops=[x.strip() for x in rest.split(",") if x.strip()] if rest else []
        s.ops=ops; s.mods=mods
        R=[regs_of(o) for o in ops]
        allr=lambda L:set().union(*L) if L else set()
        if op.startswith("v_mfma"):
            s.cls="mfma"; s.w=R[0]; s.A=R[1]; s.B=R[2]; s.C=R[3]; s.r=R[1]|R[2]|R[3]
            s.passes = 8 if "32x32" in op else (2 if "4x4" in op else 4)
        elif op.startswith("v_"):
            s.cls="valu"
            s.dpp = bool(re.search(r"row_|quad_perm|wave_",mods))
            base=re.sub(r"_(e32|e64|dpp|sdwa)$","",op)
            s.base=base
            if base.startswith("v_permlane") and "swap" in base:
                s.w=R[0]|R[1]; s.r=R[0]|R[1]
            elif base.startswith("v_cmp"):
                s.w=R[0]; s.r=allr(R[1:])
            elif base in("v_add_co_u32","v_sub_co_u32","v_addc_co_u32"):
                s.w=R[0]|R[1]; s.r=allr(R[2:])
            else:
                s.w=R[0]; s.r=allr(R[1:])
                if base in("v_fmac_f32","v_dot2c_f32_bf16","v_writelane_b32") or s.dpp: s.r|=R[0]
                if base=="v_cndmask_b32" and len(ops)==3: s.r|={("s","vcc")}
        elif op.startswith("buffer_") or op.startswith("global_"):
            s.cls="vmem"
            lds = " lds" in (" "+mods) or "_lds_" in op
            if "load" in op and not lds:
                s.w=R[0]; s.r=allr(R[1:])
                if "d16" in op: s.r|=R[0]
            else:
                s.r=allr(R)
                if "store" in op and ("x4" in op or "x3" in op):
                    s.sdata = R[0] if op.startswith("buffer_") else R[1]
            if lds: s.r|={("s","m0")}; s.lds=True
        elif op.startswith("ds_"):
            s.cls="ds"
            if "read" in op or "permute" in op or "swizzle" in op or "rtn" in op:
                s.w=R[0]; s.r=allr(R[1:])
            else: s.r=allr(R)
        elif op.startswith("s_"):
            s.cls="salu"
            if op.startswith("s_cbranch") or op=="s_branch": s.target=ops[0]
            elif op.startswith("s_cmp") or op.startswith("s_bitcmp") or op in("s_waitcnt","s_nop","s_barrier","s_endpgm","s_sleep","s_setprio"): s.r=allr(R)
            else:
                s.w=R[0] if R else set(); s.r=allr(R[1:])
                if "saveexec" in op: s.w|={("s","exec")}
    def states(s):
        if s.label or s.dir: return 0
        if s.op=="s_nop": return int(s.ops[0],0)+1
        return 1
def V(x): return {r for r in x if r[0] in "va"}
def S(x): return {r for r in x if r[0]=="s"}
def need(p,c):
    n=0
    if p.cls=="valu":
        wv=V(p.w); ws=S(p.w)
        isdot=p.base.startswith("v_dot")
        if c.cls=="mfma" and wv&c.r: n=max(n,2)
        if c.cls=="valu":
            if c.dpp and wv&c.r: n=max(n,2)
            if c.base.startswith("v_permlane") and wv&c.r: n=max(n,2)
            if c.base in("v_readlane_b32","v_readfirstlane_b32") and wv&c.r: n=max(n,1)
            if ws&c.r:
                n=max(n,2)
                if c.base in("v_readlane_b32","v_writelane_b32"): n=max(n,4)
            if p.base in TRANS and wv&c.r and c.base not in TRANS: n=max(n,1)
            if "sdwa" in p.op and "dst_sel:DWORD" not in p.mods and wv&(c.r|c.w): n=max(n,1)
        if isdot and wv&(c.r|c.w):
            same = c.cls=="valu" and c.base==p.base
            if same:
                srcAB=regs_of(c.ops[1])|regs_of(c.ops[2])
                if wv&srcAB: n=max(n,3)
            else: n=max(n,3)
        if c.cls=="vmem" and ws&c.r: n=max(n,5)
        if c.cls=="salu" and ws&c.r: n=max(n,1)
    if p.cls=="mfma":
        tbl={2:(5,4,1),4:(8,6,3),8:(12,10,7)}[p.passes]
        if c.cls=="mfma":
            if p.w&(c.A|c.B): n=max(n,tbl[0])
            if p.w&c.C and not (p.w==c.C and p.passes==c.passes): n=max(n,tbl[1])
            if p.w&c.C and p.passes==2: n=max(n,2)
            if p.w&c.w and not p.w&c.C: n=max(n,tbl[1])
        elif c.cls in("valu","vmem","ds"):
            if p.w&(c.r|c.w): n=max(n,tbl[0])
            if c.cls=="valu" and p.C&c.w: n=max(n,tbl[2])
    if p.cls=="vmem" and p.sdata:
        if p.sdata&c.w: n=max(n,2 if c.cls in("valu","mfma") else 1)
    if p.cls=="salu" and ("s","m0") in p.w and c.cls=="vmem" and ("s","m0") in c.r: n=max(n,1)
    return n
WIN=20
def pad(lines):
    ins=[I(l) for l in lines]
    out=[]; added=0
    labels={}
    for k,i in enumerate(ins):
        if i.label: labels[i.line.split(";")[0].strip()[:-1]]=k
    def deficit(hist,c):
        d=0; dist=0
        for p in reversed(hist):
            if dist>=WIN: break
            n=need(p,c) if p.cls else 0
            if n>dist: d=max(d,n-dist)
            dist+=p.states()
        return d
    hist=[]
    for k,i in enumerate(ins):
        if i.label or i.dir:
            out.append(i); continue
        d=deficit(hist,i)
        if i.target is not None and i.target in labels:
            extra=0
            while True:
                h=list(hist)+([I(f"s_nop {d+extra-1}")] if d+extra>0 else [])+[i]
                bad=0; j=labels[i.target]; cnt=0
                while j<len(ins) and cnt<WIN:
                    c=ins[j]; j+=1
                    if c.label or c.dir: continue
                    if cnt==0:
                        bad=deficit(h,c)
                    else:
                        dd=0; dist=0
                        for p in reversed(h):
                            if dist>=WIN: break
                            if p in hist:
                                n=need(p,c) if p.cls else 0
                                if n>dist: dd=max(dd,n-dist)
                            dist+=p.states()
                        bad=max(bad,dd)
                    if bad: break
                    h.append(c); cnt+=c.states()
                    if c.op in("s_branch","s_endpgm"): break
                if not bad: break
                extra+=bad
            d+=extra
        if d>0:
            n=I(f"    s_nop {d-1}"); out.append(n); hist.append(n); added+=1
        out.append(i); hist.append(i)
        if i.op in("s_branch","s_endpgm"): hist=[]
        hist=hist[-WIN-2:]
    return [i.line for i in out], added
```

```python
import sys, json
from asmlib import KNAME
import hazard
MB=1<<20
EPOCH=0; OS=0x1000; QS=0x8000; GS=0x18000; US=0x28000
PART=0x40000; FS=0xC0000; WS_USED=0x100000; STAMP=0x200000
KB=0; VB=32768
EX=0x10000; QL=EX+4096; PB=QL+2304; SB=PB+2048; XN=SB+256; EX2=0x14000; LDS_BYTES=98304
LOG2E=0x3fb8aa3b

DEF=dict(DQ=8, DA=8, DG0=1, DGs=4, DG1=8, DG3=5, D2=7, DS=8, WP=8, qrot=2, QSa=3, QSb=2, QSc=2, QP=27, place=0, GP=5, NB=4,
         stamps=0, nt="nt", slq=1, slc=1, sls=1, slf=0, qgate=1)

class G:
    def __init__(s,cfg):
        s.c=dict(DEF); s.c.update(cfg); s.l=[]; s.vm=[]; s.uid=0
    def __call__(s,t):
        for x in t.strip("\n").split("\n"):
            x=x.strip()
            if x: s.l.append("    "+x)
    def label(s,n): s.l.append(n+":")
    def new(s,p): s.uid+=1; return f"{p}_{s.uid}"
    def stamp(s,k):
        if s.c['stamps']: s(f"s_memrealtime s[{64+2*k}:{65+2*k}]")
    def vmreset(s,items=()): s.vm=list(items)
    def vmop(s,name,text): s(text); s.vm.append(name)
    def vmwait(s,name):
        k=len(s.vm)-1-s.vm.index(name)
        assert k<=63
        s(f"s_waitcnt vmcnt({k})")

def guard(g):
    g("s_add_u32 s96, s96, 1\ns_cmp_gt_u32 s96, 0x8000\ns_cbranch_scc1 L_fin")

def vr(a,n): return f"v[{a}:{a+n-1}]"
def rowreduce(g,op,v,steps=(8,4,2,1)):
    for r in steps: g(f"{op}_dpp v{v}, v{v}, v{v} row_ror:{r} row_mask:0xf bank_mask:0xf")
def xrows(g,op,v,t):
    g(f"v_mov_b32 v{t}, v{v}\nv_permlane16_swap_b32 v{v}, v{t}\n{op} v{v}, v{v}, v{t}")
    g(f"v_mov_b32 v{t}, v{v}\nv_permlane32_swap_b32 v{v}, v{t}\n{op} v{v}, v{v}, v{t}")
def wave_total(g,v,sdst):
    rowreduce(g,"v_add_f32",v)
    g(f"v_add_f32_dpp v{v}, v{v}, v{v} row_bcast:15 row_mask:0xa bank_mask:0xf")
    g(f"v_add_f32_dpp v{v}, v{v}, v{v} row_bcast:31 row_mask:0xc bank_mask:0xf")
    g(f"v_readlane_b32 s{sdst}, v{v}, 63")
def tagcheck(g,regs,acc,hi16=False):
    g(f"v_bitop3_b32 v{acc}, v{regs[0]}, v{regs[1]}, s46 bitop3:0x7e")
    for r in regs[2:]: g(f"v_bitop3_b32 v{acc}, v{acc}, v{r}, s46 bitop3:0xf6")
    g(f"v_cmp_lt_u32 vcc, 0xffff, v{acc}" if hi16 else f"v_cmp_ne_u32 vcc, 0, v{acc}")

SEL=8; AF=(16,20); ACC=24; XP=28; W2=64; RING=128; LT=192

def afrag(g,dst,src,par):
    for d in range(4): g(f"v_perm_b32 v{dst+d}, v{src}, v{src}, v{SEL+4*par+d}")

def sec_setup(g):
    g("""s_mov_b64 s[36:37], s[12:13]
    s_mov_b64 s[32:33], s[20:21]
    s_mov_b32 s38, 0x800000
    s_mov_b32 s34, 0x700000
    s_lshl_b32 s59, s60, 2
    s_add_u32 s59, s59, s3
    s_lshl_b32 s52, s61, 7
    s_lshl_b32 s49, s59, 17
    s_add_u32 s49, s49, s52
    s_mul_i32 s97, s59, 0x1c000
    s_add_u32 s97, s97, s52
    v_lshlrev_b32 v3, 4, v5
    v_mul_u32_u24 v62, 0x3800, v4
    v_add_u32 v62, v62, v3
    v_lshl_add_u32 v3, v4, 14, v3""")
def sel_setup(g):
    g("s_load_dword s47, s[26:27], 0")
    g("s_mov_b64 s[40:41], s[26:27]")
    g("""v_and_b32 v6, 1, v5
    v_cmp_eq_u32 vcc, 1, v6
    v_mov_b32 v6, 0x0c0c0100
    v_mov_b32 v7, 0x01000c0c
    v_cndmask_b32 v6, v6, v7, vcc
    v_lshrrev_b32 v1, 1, v5
    v_mov_b32 v16, 0x0c0c0c0c
    v_xor_b32 v7, v6, v16
    v_lshrrev_b32 v7, 2, v7
    v_and_b32 v7, 0x02020202, v7
    v_or_b32 v7, v7, v6""")
    for d in range(4):
        g(f"v_cmp_eq_u32 vcc, {d}, v1\nv_cndmask_b32 v{SEL+d}, v16, v6, vcc\nv_cndmask_b32 v{SEL+4+d}, v16, v7, vcc")
def mktag(g):
    g("s_add_u32 s46, s47, 0x9e3779b1")
NS=15
def sec_load(g,k):
    nt=g.c['nt']
    kk = k if k<7 else k-7
    va,srd,so = (62,"s[32:35]",97) if k<7 else (3,"s[36:39]",49)
    off=" offset:2048" if kk&1 else ""
    g.vmop(f"S{k}",f"buffer_load_dwordx4 {vr(W2+4*k,4)}, v{va}, {srd}, s{so} offen{off} {nt}")
    if kk&1 and k!=NS-1: g(f"s_addk_i32 s{so}, 0x1000")

def layernorm(g):
    U=64; A=80; Dd=84
    for k in range(8):
        g(f"v_lshlrev_b32 v{U+2*k}, 16, v{16+k}\nv_and_b32 v{U+1+2*k}, 0xffff0000, v{16+k}")
    g(f"v_pk_add_f32 {vr(A,2)}, {vr(U,2)}, {vr(U+2,2)}")
    for k in range(2,8): g(f"v_pk_add_f32 {vr(A,2)}, {vr(A,2)}, {vr(U+2*k,2)}")
    g(f"v_add_f32 v{A}, v{A}, v{A+1}")
    wave_total(g,A,54)
    M=A+2
    g(f"v_mov_b32 v{M}, 0x3a800000\nv_mul_f32 v{M}, s54, v{M}")
    ng="op_sel_hi:[1,0] neg_lo:[0,1] neg_hi:[0,1]"
    for k in range(8): g(f"v_pk_add_f32 {vr(Dd+2*k,2)}, {vr(U+2*k,2)}, {vr(M,2)} {ng}")
    g(f"v_pk_mul_f32 {vr(A,2)}, {vr(Dd,2)}, {vr(Dd,2)}")
    for k in range(1,8): g(f"v_pk_fma_f32 {vr(A,2)}, {vr(Dd+2*k,2)}, {vr(Dd+2*k,2)}, {vr(A,2)}")
    g(f"v_add_f32 v{A}, v{A}, v{A+1}")
    g(f"v_cvt_pk_bf16_f32 v{M}, v{M}, v{M}\nv_lshlrev_b32 v{M}, 16, v{M}")
    fill=[]
    for k in range(8): fill.append(f"v_pk_add_f32 {vr(U+2*k,2)}, {vr(U+2*k,2)}, {vr(M,2)} {ng}")
    for k in range(8): fill.append(f"v_cvt_pk_bf16_f32 v{16+k}, v{U+2*k}, v{U+1+2*k}")
    for k in range(8): fill+= [f"v_lshlrev_b32 v{U+2*k}, 16, v{16+k}", f"v_and_b32 v{U+1+2*k}, 0xffff0000, v{16+k}"]
    chain=[f"v_add_f32_dpp v{A}, v{A}, v{A} row_ror:{r} row_mask:0xf bank_mask:0xf" for r in (8,4,2,1)]
    chain+=[f"v_add_f32_dpp v{A}, v{A}, v{A} row_bcast:15 row_mask:0xa bank_mask:0xf",
            f"v_add_f32_dpp v{A}, v{A}, v{A} row_bcast:31 row_mask:0xc bank_mask:0xf",
            f"v_readlane_b32 s54, v{A}, 63"]
    for x in chain:
        g(fill.pop(0)); g(fill.pop(0)); g(x)
    g(f"v_mov_b32 v{A}, 0x3a800000"); g(fill.pop(0))
    chain=[f"v_mul_f32 v{A}, s54, v{A}",f"v_cvt_pk_bf16_f32 v{A}, v{A}, v{A}",f"v_lshlrev_b32 v{A}, 16, v{A}",
           f"v_add_f32 v{A}, 0x3727c5ac, v{A}",f"v_cvt_pk_bf16_f32 v{A}, v{A}, v{A}",f"v_lshlrev_b32 v{A}, 16, v{A}",
           f"v_sqrt_f32 v{A}, v{A}",None,f"v_cvt_pk_bf16_f32 v{A}, v{A}, v{A}",f"v_lshlrev_b32 v{A}, 16, v{A}",f"v_rcp_f32 v{A}, v{A}"]
    for x in chain: g(x if x else fill.pop(0))
    for x in fill: g(x)
    for k in range(8): g(f"v_pk_mul_f32 {vr(U+2*k,2)}, {vr(U+2*k,2)}, {vr(A,2)} op_sel_hi:[1,0]")
    for k in range(8): g(f"v_cvt_pk_bf16_f32 v{16+k}, v{U+2*k}, v{U+1+2*k}")
    g("ds_write_b128 v11, v[16:19]\nds_write_b128 v11, v[20:23] offset:16")

def exchange(g):
    g(f"""s_lshl_b32 s50, s3, 10
    s_add_u32 s50, s50, {EX}
    v_lshl_add_u32 v6, v0, 4, s50
    ds_write_b128 v6, {vr(ACC,4)}
    s_waitcnt lgkmcnt(0)
    s_barrier""")

def gu(g):
    c=g.c; nt=c['nt']; RS=7168; W=16
    g.label("L_G")
    g(f"""v_lshrrev_b32 v4, 3, v0
    v_and_b32 v5, 7, v0
    s_lshl_b32 s50, s45, 7
    s_mov_b32 s30, {RS*1024}
    s_cmp_lt_u32 s44, 224
    s_cbranch_scc0 L_GS""")
    for single in (0,1):
        NP = 16 if single else 32
        if single:
            g.label("L_GS"); D=lambda i:c['DG3']
            g("s_lshl_b32 s51, s99, 2\ns_add_u32 s51, s51, s3")
        else:
            D=lambda i:(c['DG0'] if i<c['DGs'] else c['DG1'])
            g("s_mov_b32 s51, s3")
        g(f"""v_mul_u32_u24 v2, {RS*NP}, v4
        v_lshl_add_u32 v2, v5, 4, v2
        s_mul_i32 s48, s51, {RS*NP*8}
        s_add_u32 s48, s48, s50
        s_mul_i32 s51, s51, {NP*16}
        s_add_u32 s51, s51, {XN}
        v_lshl_add_u32 v60, v4, {5 if single else 6}, s51
        s_cmp_eq_u32 s98, 0
        s_waitcnt lgkmcnt(0)
        s_cselect_b64 s[28:29], s[16:17], s[18:19]""")
        g.vmreset()
        nP=[0]; nS=[0]
        def issue():
            if nP[0]<NP:
                i=nP[0]; g.vmop(f"P{i}",f"buffer_load_dwordx4 {vr(RING+4*(i%W),4)}, v2, s[28:31], s48 offen {nt}")
                if i<NP-1: g(f"s_addk_i32 s48, {RS}")
                nP[0]+=1
            elif nS[0]<c['GP']: sec_load(g,nS[0]); nS[0]+=1
            else: return False
            return True
        for _ in range(D(0)): issue()
        if c['stamps']!=2: g.stamp(1)
        sec_setup(g); sel_setup(g)
        g("s_barrier")
        for k in range(NP//8): g(f"ds_read_b128 {vr(XP+4*k,4)}, v60 offset:{16*k}")
        g("s_waitcnt lgkmcnt(0)")
        mktag(g)
        g.stamp(2)
        afrag(g,AF[0],XP,0)
        for i in range(NP):
            g.vmwait(f"P{i}")
            C = "0" if i==0 else vr(ACC,4)
            g(f"v_mfma_f32_16x16x32_bf16 {vr(ACC,4)}, {vr(AF[i&1],4)}, {vr(RING+4*(i%W),4)}, {C}")
            if i<NP-1: afrag(g,AF[(i+1)&1],XP+((i+1)>>1),(i+1)&1)
            while nP[0]+nS[0]-(i+1)<D(i+1) and issue(): pass
        g.stamp(3)
        exchange(g)
        if single:
            while nS[0]<NS:
                g.vmwait(f"S{nS[0]-c['DG3']}") if nS[0]>=c['DG3'] else None
                sec_load(g,nS[0]); nS[0]+=1
            g("s_branch L_SEC2")
        else:
            while nS[0]<c['D2']: sec_load(g,nS[0]); nS[0]+=1
            g("s_branch L_SEC1")

def qa(g):
    c=g.c; nt=c['nt']; RS=8192; W=16
    g.label("L_QA")
    g(f"""v_lshrrev_b32 v4, 3, v0
    v_and_b32 v5, 7, v0
    v_lshlrev_b32 v2, 17, v4
    v_lshl_add_u32 v2, v5, 4, v2
    s_add_u32 s54, s44, {c['qrot']}
    s_and_b32 s54, s54, 63
    s_lshr_b32 s55, s44, 6
    s_lshl_b32 s55, s55, 2
    s_add_u32 s55, s55, s3
    s_lshl_b32 s48, s55, 20
    s_lshl_b32 s50, s54, 7
    s_add_u32 s48, s48, s50
    s_lshl_b32 s55, s55, 8
    s_add_u32 s55, s55, {XN}
    s_mov_b32 s30, {RS*1024}
    s_waitcnt lgkmcnt(0)
    s_mov_b64 s[28:29], s[10:11]""")
    g.vmreset()
    n=[0]
    def issue():
        i=n[0]; n[0]+=1
        if i<16:
            g.vmop(f"P{i}",f"buffer_load_dwordx4 {vr(RING+4*i,4)}, v2, s[28:31], s48 offen {nt}")
            if i<15: g(f"s_addk_i32 s48, {RS}")
            return
        k=i-16; b=k&3
        if k==0: g(f"s_mov_b64 s[28:29], s[6:7]\ns_mov_b32 s30, {64*MB}\ns_mov_b32 m0, s58")
        if k==8: g(f"s_mov_b64 s[28:29], s[8:9]\ns_add_u32 m0, s58, {VB}\ns_sub_u32 s56, s56, 0x1000")
        if k in (4,12): g("s_addk_i32 m0, 0x1000\ns_addk_i32 s56, 0x1000")
        off=f" offset:{b*1024}" if b else ""
        va = 44+b if k<8 else 48+(b&1)
        g.vmop(f"P{i}",f"buffer_load_dwordx4 v{va}, s[28:31], s56 offen{off} {nt} lds")
    for _ in range(c['DQ']): issue()
    g.stamp(1)
    g("v_lshl_add_u32 v60, v4, 5, s55")
    sel_setup(g)
    sec_setup(g)
    g(f"""v_lshrrev_b32 v52, 4, v0
    v_and_b32 v53, 15, v0
    v_lshlrev_b32 v6, 8, v52
    s_lshr_b32 s54, s44, 5
    s_and_b32 s55, s44, 31
    s_lshl_b32 s56, s54, 24
    s_lshl_b32 s50, s55, 15
    s_add_u32 s56, s56, s50
    s_lshl_b32 s58, s3, 13
    s_add_u32 s56, s56, s58
    s_add_u32 s56, s56, {15*MB}""")
    for b in range(4):
        g(f"v_add_u32 v7, {4*b}, v52\nv_xor_b32 v7, v7, v53\nv_lshl_add_u32 v{44+b}, v7, 4, v6")
    for b in range(2):
        g(f"v_add_u32 v7, {4*b}, v52\nv_lshlrev_b32 v7, 1, v7\nv_xor_b32 v7, v7, v53\nv_lshl_add_u32 v{48+b}, v7, 4, v6")
    NB=c.get('NB',4)
    for i in range(NB):
        g.vmwait(f"P{i}"); issue()
    g("s_barrier")
    for k in range(2): g(f"ds_read_b128 {vr(XP+4*k,4)}, v60 offset:{16*k}")
    g("s_waitcnt lgkmcnt(0)")
    mktag(g)
    if c['stamps']!=2: g.stamp(2)
    afrag(g,AF[0],XP,0)
    for i in range(16):
        if i>=NB: g.vmwait(f"P{i}")
        C = "0" if i==0 else vr(ACC,4)
        g(f"v_mfma_f32_16x16x32_bf16 {vr(ACC,4)}, {vr(AF[i&1],4)}, {vr(RING+4*i,4)}, {C}")
        if i<15: afrag(g,AF[(i+1)&1],XP+((i+1)>>1),(i+1)&1)
        Dn = c['DQ'] if n[0]<16 else c['DA']
        while n[0]<32 and n[0]-(i+1)<Dn: issue()
    exchange(g)
    g.stamp(3)
    g(f"v_lshlrev_b32 v6, 8, v53\nv_add_u32 v6, s58, v6")
    for s_ in range(4):
        g(f"v_add_u32 v7, {4*s_}, v52\nv_xor_b32 v7, v7, v53\nv_lshl_add_u32 v{36+s_}, v7, 4, v6")
    done=15
    def more(k):
        nonlocal done
        for _ in range(k):
            if n[0]<32:
                t=n[0]-c['DA']
                if t>done: done=t; g.vmwait(f"P{t}")
                issue()
    more(2)
    g(f"""v_lshrrev_b32 v6, 2, v53
    v_lshl_add_u32 v6, v52, 2, v6
    v_and_b32 v7, 7, v6
    v_lshlrev_b32 v7, 1, v7
    v_bfe_u32 v16, v53, 1, 1
    s_lshl_b32 s51, s3, 2
    v_add_u32 v16, s51, v16
    v_and_b32 v17, 1, v53
    v_lshlrev_b32 v17, 3, v17
    v_lshl_add_u32 v17, v6, 8, v17
    v_xor_b32 v18, v16, v7
    v_lshl_add_u32 v40, v18, 4, v17
    v_add_u32 v16, 2, v16
    v_xor_b32 v18, v16, v7
    v_lshl_add_u32 v41, v18, 4, v17""")
    more(2)
    g(f"""v_and_b32 v7, 7, v53
    v_mul_u32_u24 v42, 288, v7
    v_lshl_add_u32 v42, v52, 4, v42
    v_add_u32 v42, {QL}, v42
    v_lshl_add_u32 v43, v52, 3, v7
    v_lshlrev_b32 v43, 4, v43
    v_add_u32 v43, {PB}, v43
    v_bfe_u32 v16, v53, 3, 1
    s_lshl_b32 s51, s3, 9
    v_lshl_add_u32 v54, v16, 3, v43
    v_add_u32 v54, s51, v54
    v_lshlrev_b32 v55, 5, v7
    v_add_u32 v55, {SB}, v55
    v_lshlrev_b32 v56, 14, v4
    v_lshl_add_u32 v56, v5, 4, v56
    v_and_b32 v57, 3, v5
    v_lshl_add_u32 v57, v57, 4, v4
    v_lshrrev_b32 v16, 2, v5
    v_lshl_add_u32 v57, v16, 3, v57
    v_lshlrev_b32 v57, 2, v57
    v_lshlrev_b32 v58, 4, v0
    s_mul_i32 s51, s3, 576
    s_add_u32 s51, s51, {QL}
    v_lshl_add_u32 v59, v0, 2, s51
    s_lshl_b32 s57, s54, 13
    s_lshl_b32 s51, s3, 11
    s_add_u32 s57, s57, s51
    s_add_u32 s57, s57, {QS}
    s_add_u32 s53, s57, 0x8000""")
    more(16)
    QR=128; QC=144; KF=160; VF=192; S=28; T=224
    def qloads():
        for h in range(2):
            for kh in range(2):
                g.vmop(f"q{h}{kh}",f"buffer_load_dwordx4 {vr(QR+8*h+4*kh,4)}, v58, s[40:43], s{57 if kh==0 else 53} offen offset:{1024*h} sc1")
    g.vmwait(f"P{c['QP']}")
    if c['stamps']==2: g.stamp(2)
    qloads()
    for kb in range(2):
        for s_ in range(4): g(f"ds_read_b128 {vr(KF+16*kb+4*s_,4)}, v{36+s_} offset:{kb*4096}")
    g("s_branch L_Aq1")
    g.label("L_Aq0")
    guard(g)
    if c['slq']: g(f"s_sleep {c['slq']}")
    qloads()
    g.label("L_Aq1")
    g("s_waitcnt vmcnt(0)")
    tagcheck(g,[QR+2*k+1 for k in range(8)],6)
    g("s_cbranch_vccnz L_Aq0")
    g.stamp(4)
    g(f"""v_add_f32 v16, v{QR}, v{QR+4}
    v_add_f32 v17, v{QR+2}, v{QR+6}
    v_add_f32 v18, v{QR+8}, v{QR+12}
    v_add_f32 v19, v{QR+10}, v{QR+14}
    v_cvt_pk_bf16_f32 v16, v16, v17
    v_cvt_pk_bf16_f32 v18, v18, v19
    ds_write2_b32 v59, v16, v18 offset1:72
    s_waitcnt lgkmcnt(0)
    s_barrier""")
    for s_ in range(4): g(f"ds_read_b128 {vr(QC+4*s_,4)}, v42 offset:{64*s_}")
    for w in range(4):
        for db in range(2):
            for y in range(2):
                g(f"ds_read_b64_tr_b16 {vr(VF+8*w+4*db+2*y,2)}, v{40+db} offset:{VB+(32*w+16*y)*256}")
    g.vmreset()
    for k in range(c['QSa']): sec_load(g,k)
    g("s_mov_b32 s62, 0xff00ff00\ns_mov_b32 s63, 0xff00ff00\ns_mov_b32 s50, 0x3db504f3\ns_mov_b32 s51, 0x3fb8aa3b")
    g("s_waitcnt lgkmcnt(15)")
    for s_ in range(4):
        for kb in range(2):
            C="0" if s_==0 else vr(S+4*kb,4)
            g(f"v_mfma_f32_16x16x32_bf16 {vr(S+4*kb,4)}, {vr(KF+16*kb+4*s_,4)}, {vr(QC+4*s_,4)}, {C}")
    for k in range(4): g(f"v_cndmask_b32 v{T+k}, v{S+k}, v{S+4+k}, s[62:63]")
    for k in range(2): g(f"v_cvt_pk_bf16_f32 v{S+k}, v{T+2*k}, v{T+2*k+1}")
    for k in range(2): g(f"v_lshlrev_b32 v{T+2*k}, 16, v{S+k}\nv_and_b32 v{T+2*k+1}, 0xffff0000, v{S+k}")
    for k in range(4): g(f"v_mul_f32 v{T+k}, s50, v{T+k}")
    for k in range(2): g(f"v_cvt_pk_bf16_f32 v{S+k}, v{T+2*k}, v{T+2*k+1}")
    for k in range(2): g(f"v_lshlrev_b32 v{T+2*k}, 16, v{S+k}\nv_and_b32 v{T+2*k+1}, 0xffff0000, v{S+k}")
    g(f"v_max3_f32 v6, v{T}, v{T+1}, v{T+2}\nv_max_f32 v6, v6, v{T+3}")
    rowreduce(g,"v_max_f32",6,(8,)); xrows(g,"v_max_f32",6,7)
    g("v_mul_f32 v6, s51, v6")
    for k in range(4): g(f"v_fma_f32 v{T+k}, v{T+k}, s51, -v6")
    for k in range(4): g(f"v_exp_f32 v{T+k}, v{T+k}")
    for k in range(2): g(f"v_cvt_pk_bf16_f32 v{S+k}, v{T+2*k}, v{T+2*k+1}")
    g(f"""ds_write_b64 v54, {vr(S,2)}
    v_pk_add_f32 {vr(T,2)}, {vr(T,2)}, {vr(T+2,2)}
    v_add_f32 v7, v{T}, v{T+1}""")
    rowreduce(g,"v_add_f32",7,(8,)); xrows(g,"v_add_f32",7,17)
    g(f"""s_lshl_b32 s50, s3, 3
    v_add_u32 v16, s50, v55
    ds_write_b64 v16, v[6:7]
    s_waitcnt lgkmcnt(0)
    s_barrier""")
    PR=128; PA=160
    g(f"ds_read_b128 {vr(T,4)}, v55\nds_read_b128 {vr(T+4,4)}, v55 offset:16")
    for w in range(4): g(f"ds_read_b128 {vr(PR+4*w,4)}, v43 offset:{w*512}")
    for k in range(c['QSa'],c['QSa']+c['QSb']): sec_load(g,k)
    g(f"""s_lshl_b32 s50, s54, 17
    s_lshl_b32 s51, s55, 7
    s_add_u32 s50, s50, s51
    s_lshl_b32 s51, s3, 12
    s_add_u32 s50, s50, s51
    s_add_u32 s50, s50, {PART}
    s_mov_b32 s51, 0x07060302
    s_mov_b32 s52, 0x07060100
    v_mov_b32 v23, s46
    s_waitcnt lgkmcnt(0)""")
    for w in range(4):
        for db in range(2):
            g(f"v_mfma_f32_16x16x32_bf16 {vr(PA+8*w+4*db,4)}, {vr(VF+8*w+4*db,4)}, {vr(PR+4*w,4)}, 0")
    g(f"v_max3_f32 v24, v{T}, v{T+2}, v{T+4}\nv_max_f32 v24, v24, v{T+6}")
    for w in range(4): g(f"v_sub_f32 v{T+2*w}, v{T+2*w}, v24")
    for w in range(4): g(f"v_exp_f32 v{T+2*w}, v{T+2*w}")
    g(f"v_mul_f32 v26, v{T}, v{T+1}")
    for w in range(1,4): g(f"v_fmac_f32 v26, v{T+2*w}, v{T+2*w+1}")
    for w in range(4):
        for k in range(4): g(f"v_cndmask_b32 v{PA+8*w+k}, v{PA+8*w+k}, v{PA+8*w+4+k}, s[62:63]")
    for k in range(4): g(f"v_mul_f32 v{28+k}, v{T}, v{PA+k}")
    for w in range(1,4):
        for k in range(4): g(f"v_fmac_f32 v{28+k}, v{T+2*w}, v{PA+8*w+k}")
    g(f"""v_rcp_f32 v25, v26
    v_log_f32 v26, v26
    v_pk_mul_f32 v[28:29], v[28:29], v[24:25] op_sel:[0,1] op_sel_hi:[1,1]
    v_pk_mul_f32 v[30:31], v[30:31], v[24:25] op_sel:[0,1] op_sel_hi:[1,1]
    v_add_f32 v26, v26, v24
    v_cvt_pk_bf16_f32 v28, v28, v29
    v_cvt_pk_bf16_f32 v30, v30, v31
    ds_bpermute_b32 v21, v57, v26
    ds_bpermute_b32 v16, v57, v28
    ds_bpermute_b32 v18, v57, v30
    s_waitcnt lgkmcnt(0)
    v_perm_b32 v17, v23, v21, s51
    v_perm_b32 v19, v23, v21, s52
    """)
    g.vmop("pub","buffer_store_dwordx4 v[16:19], v56, s[40:43], s50 offen sc1")
    g.label("L_A9")
    g.stamp(5)
    nq=c['QSa']+c['QSb']
    for _ in range(c['QSc']): sec_load(g,nq); nq+=1
    if c['qgate']: g("s_barrier")
    assert nq<=c['D2']
    while nq<c['D2']: sec_load(g,nq); nq+=1
    g("s_branch L_SEC1")

def secondary(g):
    c=g.c; D2=c['D2']; DS=c['DS']; ACC2=52
    g.vmreset([f"S{k}" for k in range(D2)])
    g.label("L_SEC1")
    for k in range(D2,NS):
        if k-DS>=0: g.vmwait(f"S{k-DS}")
        sec_load(g,k)
    g.label("L_SEC2")
    g(f"""s_lshl_b32 s50, s3, 11
    s_add_u32 s50, s50, {EX2}
    v_lshl_add_u32 v61, v0, 4, s50
    s_lshl_b32 s57, s59, 8
    s_add_u32 s57, s57, {OS}
    s_mul_i32 s55, s59, 896
    s_add_u32 s56, s55, {US}
    s_add_u32 s55, s55, {GS}
    v_lshlrev_b32 v60, 5, v4
    v_min_u32 v59, 55, v0
    v_lshlrev_b32 v59, 4, v59
    v_mul_u32_u24 v63, 28, v4
    s_mov_b32 s50, 0x3d372713
    s_mov_b32 s51, 0xc0135761""")
    def hpoll():
        g.vmop("h0",f"buffer_load_dwordx4 {vr(XP,4)}, v59, s[40:43], s55 offen sc1")
        g.vmop("h1",f"buffer_load_dwordx4 {vr(XP+4,4)}, v59, s[40:43], s56 offen sc1")
    def opoll():
        for k in range(2): g.vmop(f"o{k}",f"buffer_load_dwordx4 {vr(XP+16+4*k,4)}, v60, s[40:43], s57 offen offset:{16*k} sc1")
    if c['WP']>=0: g.vmwait(f"S{c['WP']}")
    hpoll(); opoll()
    for kind,poll,last,tags in (("D",hpoll,"h1",[XP+1,XP+3,XP+5,XP+7]),("W",opoll,"o1",[XP+17,XP+19,XP+21,XP+23])):
        g.vmwait(last)
        g(f"s_branch L_{kind}p1")
        g.label(f"L_{kind}p0")
        save=list(g.vm)
        guard(g)
        if c['sls']: g(f"s_sleep {c['sls']}")
        poll()
        g("s_waitcnt vmcnt(0)")
        g.vm=save
        g.label(f"L_{kind}p1")
        tagcheck(g,tags,6)
        g(f"s_cbranch_vccnz L_{kind}p0")
        if kind=="D":
            if c['stamps']==2: g.stamp(1)
            g(f"""v_add_f32 v16, v{XP}, v{XP+2}
            v_add_f32 v17, v{XP+4}, v{XP+6}
            v_cvt_pk_bf16_f32 v17, v16, v17
            v_lshlrev_b32 v16, 16, v17
            v_and_b32 v17, 0xffff0000, v17
            v_mul_f32 v18, v16, v16
            v_fma_f32 v18, v18, s50, 1.0
            v_mul_f32 v18, v18, v16
            v_mul_f32 v18, s51, v18
            v_exp_f32 v18, v18
            v_add_f32 v18, 1.0, v18
            v_rcp_f32 v18, v18
            v_mul_f32 v18, v18, v16
            v_cvt_pk_bf16_f32 v18, v18, v18
            v_lshlrev_b32 v18, 16, v18
            v_mul_f32 v18, v18, v17
            v_cvt_pk_bf16_f32 v18, v18, v18""")
            for k in range(7): g(f"ds_bpermute_b32 v{XP+8+k}, v63, v18 offset:{4*k}")
            g("s_waitcnt lgkmcnt(0)")
            N=7; src=lambda i:XP+8+i; par=lambda i:0; acc=ACC2; w0=0
        else:
            g.stamp(6)
            N=8; src=lambda i:XP+16+2*(i>>1); par=lambda i:i&1; acc=ACC; w0=7
        afrag(g,AF[0],src(0),par(0))
        for i in range(N):
            C="0" if i==0 else vr(acc,4)
            g(f"v_mfma_f32_16x16x32_bf16 {vr(acc,4)}, {vr(AF[i&1],4)}, {vr(W2+4*(w0+i),4)}, {C}")
            if i<N-1: afrag(g,AF[(i+1)&1],src(i+1),par(i+1))
            if kind=="W" and i==2: g(f"ds_write_b128 v61, {vr(ACC2,4)} offset:1024")
    g(f"""ds_write_b128 v61, {vr(ACC,4)}
    s_waitcnt lgkmcnt(0)
    s_barrier""")
    g.stamp(7)
    g("s_branch L_fin")

def comm(g):
    c=g.c
    g.label("L_COMM")
    g(f"""v_lshlrev_b32 v11, 5, v0
    s_movk_i32 s34, 0x800
    v_and_b32 v5, 3, v0
    v_lshlrev_b32 v2, 1, v5
    s_lshl_b32 s48, s44, 3
    v_mov_b32 v3, 0
    s_waitcnt lgkmcnt(0)
    s_mov_b64 s[32:33], s[4:5]
    buffer_load_dwordx4 v[16:19], v11, s[32:35], 0 offen
    buffer_load_dwordx4 v[20:23], v11, s[32:35], 0 offen offset:16
    buffer_load_short_d16_hi v3, v2, s[32:35], s48 offen
    s_load_dword s47, s[26:27], 0
    s_mov_b32 s3, 4
    s_movk_i32 s38, 0x800
    s_mov_b64 s[36:37], s[22:23]
    s_mov_b64 s[40:41], s[26:27]
    v_add_u32 v11, {XN}, v11
    v_lshrrev_b32 v4, 2, v0
    v_lshlrev_b32 v4, 10, v4
    v_lshl_add_u32 v48, v5, 4, v4
    v_bfe_u32 v4, v0, 2, 1
    v_lshrrev_b32 v6, 3, v0
    v_lshl_add_u32 v4, v4, 4, v6
    v_lshlrev_b32 v4, 4, v4
    v_lshl_add_u32 v49, v5, 2, v4
    v_add_u32 v49, {EX2}, v49
    v_add_u32 v50, 640, v49
    v_add_u32 v51, {EX-EX2}, v49
    v_add_u32 v52, 2048, v51
    v_add_u32 v53, 1024, v51
    v_add_u32 v54, 3072, v51
    v_lshlrev_b32 v9, 3, v0
    v_lshlrev_b32 v10, 4, v0
    s_lshl_b32 s50, s45, 10
    s_lshl_b32 s51, s98, 16
    s_add_u32 s50, s50, s51
    s_add_u32 s50, s50, {GS}
    s_add_u32 s52, s44, {c['qrot']}
    s_and_b32 s52, s52, 63
    s_and_b32 s53, s44, 64
    s_or_b32 s52, s52, s53
    s_lshl_b32 s52, s52, 9
    s_add_u32 s52, s52, {QS}
    s_waitcnt lgkmcnt(0)""")
    mktag(g)
    g("""v_mov_b32 v5, s46
    v_mov_b32 v7, s46
    s_waitcnt vmcnt(1)""")
    layernorm(g)
    g("s_waitcnt lgkmcnt(0)\ns_barrier")
    if c['stamps']==2: g.stamp(7)
    g("s_barrier")
    for w in range(4): g(f"ds_read2_b32 {vr(16+2*w,2)}, v{51+(w>>1)} offset0:{0} offset1:{160}".replace("offset0:0",f"offset0:0") if (w&1)==0 else f"ds_read2_b32 {vr(16+2*w,2)}, v{53+(w>>1)} offset0:0 offset1:160")
    g(f"""s_cmp_lt_u32 s44, 128
    s_waitcnt lgkmcnt(0)
    v_pk_add_f32 v[16:17], v[16:17], v[18:19]
    v_pk_add_f32 v[20:21], v[20:21], v[22:23]
    v_add_f32 v4, v16, v17
    v_add_f32 v6, v20, v21
    s_cbranch_scc1 L_Cq
    s_cmp_lt_u32 s44, 224
    s_cbranch_scc0 L_Cs
    buffer_store_dwordx4 v[4:7], v10, s[40:43], s50 offen sc1""")
    g.stamp(1)
    g("s_branch L_Cfin")
    g.label("L_Cs")
    g("""v_add_f32 v4, v4, v6
    s_lshl_b32 s51, s99, 3
    s_add_u32 s50, s50, s51
    buffer_store_dwordx2 v[4:5], v10, s[40:43], s50 offen sc1""")
    g.stamp(1)
    g("s_branch L_Cfin")
    g.label("L_Cq")
    g("""v_add_f32 v4, v4, v6
    buffer_store_dwordx2 v[4:5], v9, s[40:43], s52 offen sc1""")
    g.stamp(1)
    g(f"""s_lshl_b32 s53, s44, 12
    s_add_u32 s53, s53, {PART}
    s_lshl_b32 s55, s44, 7
    s_add_u32 s55, s55, {OS}
    s_mov_b32 s54, 0x05040100
    s_barrier
    s_barrier""")
    g.stamp(2)
    g.label("L_Cc0")
    guard(g)
    if c['slc']: g(f"s_sleep {c['slc']}")
    for i in range(4): g(f"buffer_load_dwordx4 {vr(16+4*i,4)}, v10, s[40:43], s53 offen offset:{i*1024} sc1")
    g("s_waitcnt vmcnt(0)")
    tagcheck(g,[17+2*k for k in range(8)],6,hi16=True)
    g("s_cbranch_vccnz L_Cc0")
    g.stamp(3)
    for i in range(4): g(f"v_perm_b32 v{12+i}, v{17+4*i}, v{19+4*i}, s54")
    g("v_max3_f32 v4, v12, v13, v14\nv_max_f32 v4, v4, v15")
    for i in range(4):
        g(f"v_lshlrev_b32 v{32+4*i}, 16, v{16+4*i}\nv_and_b32 v{33+4*i}, 0xffff0000, v{16+4*i}")
    rowreduce(g,"v_max_f32",4,(8,))
    g("v_mov_b32 v6, v4")
    for i in range(2):
        g(f"v_lshlrev_b32 v{34+4*i}, 16, v{18+4*i}\nv_and_b32 v{35+4*i}, 0xffff0000, v{18+4*i}")
    g("v_permlane16_swap_b32 v4, v6\nv_max_f32 v4, v4, v6\nv_mov_b32 v6, v4")
    for i in range(2,4):
        g(f"v_lshlrev_b32 v{34+4*i}, 16, v{18+4*i}\nv_and_b32 v{35+4*i}, 0xffff0000, v{18+4*i}")
    g("v_permlane32_swap_b32 v4, v6\nv_max_f32 v4, v4, v6")
    for i in range(4): g(f"v_sub_f32 v{12+i}, v{12+i}, v4")
    for i in range(4): g(f"v_exp_f32 v{12+i}, v{12+i}")
    for i in range(4):
        sel="op_sel_hi:[1,0]" if i%2==0 else "op_sel:[0,1] op_sel_hi:[1,1]"
        pr=vr(12+(i&~1),2)
        for h in range(2):
            if i==0: g(f"v_pk_mul_f32 {vr(16+2*h,2)}, {vr(32+2*h,2)}, {pr} {sel}")
            else:
                sel3="op_sel_hi:[1,0,1]" if i%2==0 else "op_sel:[0,1,0] op_sel_hi:[1,1,1]"
                g(f"v_pk_fma_f32 {vr(16+2*h,2)}, {vr(32+4*i+2*h,2)}, {pr}, {vr(16+2*h,2)} {sel3}")
    g("""v_pk_add_f32 v[12:13], v[12:13], v[14:15]
    v_add_f32 v12, v12, v13
    v_permlane32_swap_b32 v16, v18
    v_permlane32_swap_b32 v17, v19
    v_add_f32_dpp v12, v12, v12 row_ror:8 row_mask:0xf bank_mask:0xf
    v_pk_add_f32 v[16:17], v[16:17], v[18:19]
    v_mov_b32 v13, v12
    v_mov_b32 v18, v16
    v_mov_b32 v19, v17
    v_permlane16_swap_b32 v12, v13
    v_permlane16_swap_b32 v16, v18
    v_permlane16_swap_b32 v17, v19
    v_add_f32 v12, v12, v13
    v_pk_add_f32 v[16:17], v[16:17], v[18:19]
    v_mov_b32 v13, v12
    v_add_f32_dpp v16, v16, v16 row_ror:8 row_mask:0xf bank_mask:0xf
    v_add_f32_dpp v17, v17, v17 row_ror:8 row_mask:0xf bank_mask:0xf
    v_permlane32_swap_b32 v12, v13
    v_add_f32 v12, v12, v13
    v_rcp_f32 v12, v12
    v_pk_mul_f32 v[16:17], v[16:17], v[12:13] op_sel_hi:[1,0]
    v_cvt_pk_bf16_f32 v4, v16, v17
    v_mov_b32 v6, v4
    v_permlane32_swap_b32 v4, v6
    s_mov_b64 exec, 0xff
    buffer_store_dwordx4 v[4:7], v10, s[40:43], s55 offen sc1
    s_mov_b64 exec, -1""")
    if c['qgate']: g("s_barrier")
    g.label("L_Cfin")
    g(f"""s_lshl_b32 s50, s61, 14
    s_lshl_b32 s51, s60, 10
    s_add_u32 s50, s50, s51
    s_add_u32 s50, s50, {FS}
    s_lshr_b32 s51, s44, 4
    s_lshl_b32 s51, s51, 14
    s_and_b32 s52, s44, 15
    s_lshl_b32 s52, s52, 6
    s_add_u32 s51, s51, s52
    s_add_u32 s51, s51, {FS}
    s_mov_b32 s52, 0xbfb8aa3b
    s_barrier""")
    for w in range(4):
        for h in range(2): g(f"ds_read2st64_b32 {vr(16+4*w+2*h,2)}, v{49+h} offset0:{w*8} offset1:{w*8+4}")
    g("""s_waitcnt lgkmcnt(4)
    v_pk_add_f32 v[16:17], v[16:17], v[18:19]
    v_pk_add_f32 v[20:21], v[20:21], v[22:23]
    v_pk_add_f32 v[16:17], v[16:17], v[20:21]
    s_waitcnt lgkmcnt(0)
    v_pk_add_f32 v[24:25], v[24:25], v[26:27]
    v_pk_add_f32 v[28:29], v[28:29], v[30:31]
    v_pk_add_f32 v[16:17], v[16:17], v[24:25]
    v_add_f32 v4, v16, v28
    v_add_f32 v6, v17, v29
    buffer_store_dwordx4 v[4:7], v10, s[40:43], s50 offen sc1""")
    g.stamp(4)
    g.label("L_Cf0")
    guard(g)
    if c['slf']: g(f"s_sleep {c['slf']}")
    g("buffer_load_dwordx4 v[12:15], v48, s[40:43], s51 offen sc1\ns_waitcnt vmcnt(0)")
    tagcheck(g,[13,15],16)
    g("s_cbranch_vccnz L_Cf0")
    g.stamp(5)
    for h in range(c.get('hops',0)):
        g(f"s_branch L_hop{h}"); g.l.append(".p2align 9"); g.label(f"L_hop{h}")
    g("""v_permlane32_swap_b32 v14, v12
    v_add_f32 v12, v12, v14
    v_mov_b32 v14, v12
    v_permlane16_swap_b32 v12, v14
    v_add_f32 v12, v12, v14""")
    rowreduce(g,"v_add_f32",12,(8,4))
    g("""v_cvt_pk_bf16_f32 v12, v12, v12
    v_lshlrev_b32 v12, 16, v12
    v_mul_f32 v13, s52, v12
    v_mov_b32 v14, v12
    v_exp_f32 v13, v13
    v_permlane32_swap_b32 v12, v14
    v_add_f32 v13, 1.0, v13
    v_rcp_f32 v13, v13
    v_mul_f32 v13, v13, v12
    v_cvt_pk_bf16_f32 v13, v13, v13
    v_lshlrev_b32 v13, 16, v13
    v_mul_f32 v13, v13, v14
    v_cvt_pk_bf16_f32 v13, v13, v13
    v_lshlrev_b32 v13, 16, v13
    v_add_f32 v13, v13, v3
    v_cvt_pk_bf16_f32 v13, v13, v13
    s_mov_b64 exec, 15
    buffer_store_short v13, v2, s[36:39], s48 offen sc1
    s_cmp_lg_u32 s44, 48
    s_cbranch_scc1 L_Cend
    s_mov_b64 exec, 1
    v_mov_b32 v4, 0
    buffer_store_dword v7, v4, s[40:43], 0 offen sc1""")
    g.label("L_Cend")
    g.stamp(6)

def build(cfg):
    g=G(cfg); c=g.c
    g.stamp(0)
    g("""s_load_dwordx16 s[4:19], s[0:1], 0
    s_load_dwordx8 s[20:27], s[0:1], 64
    v_lshrrev_b32 v1, 6, v0
    s_cmp_ge_u32 s2, 256
    s_cbranch_scc1 L_end
    v_readfirstlane_b32 s3, v1
    v_and_b32 v0, 63, v0""")
    if c['stamps']:
        for k in range(1,8): g(f"s_mov_b32 s{64+2*k}, 0")
    g("s_mov_b32 s98, 0\ns_mov_b32 s45, 0")
    if c['place']:
        g("""s_and_b32 s50, s2, 4
        s_lshl_b32 s50, s50, 4
        s_bfe_u32 s51, s2, 0x40003
        s_lshl_b32 s51, s51, 2
        s_or_b32 s50, s50, s51
        s_and_b32 s51, s2, 3
        s_or_b32 s50, s50, s51
        s_or_b32 s50, s50, 128
        s_cmp_lt_u32 s2, 128
        s_cselect_b32 s44, s2, s50""")
    else: g("s_mov_b32 s44, s2")
    g(f"""    s_mov_b32 s31, 0x20000
    s_mov_b32 s35, 0x20000
    s_mov_b32 s96, 0
    s_mov_b32 s39, 0x20000
    s_mov_b32 s43, 0x20000
    s_mov_b32 s42, {256*MB if c['stamps'] else WS_USED}
    s_and_b32 s60, s44, 15
    s_lshr_b32 s50, s44, 4
    s_cmp_ge_u32 s50, 7
    s_cselect_b32 s51, 1, 0
    s_add_u32 s61, s50, s51
    s_and_b32 s51, s61, 7
    s_cmp_ge_u32 s51, 3
    s_addc_u32 s61, s61, 0
    s_cmp_lt_u32 s44, 128
    s_cbranch_scc1 L_dec
    s_sub_u32 s50, s44, 128
    s_cmp_lt_u32 s44, 224
    s_cbranch_scc1 L_decn
    s_bfe_u32 s61, s44, 0x10004
    s_lshl_b32 s61, s61, 3
    s_add_u32 s61, s61, 3
    s_and_b32 s99, s44, 1
    s_sub_u32 s50, s44, 224
    s_lshr_b32 s50, s50, 1
    s_cmp_lt_u32 s50, 14
    s_cbranch_scc0 L_decm
    s_cmp_ge_u32 s50, 7
    s_cselect_b32 s98, 1, 0
    s_mul_i32 s51, s98, 7
    s_sub_u32 s50, s50, s51
    s_lshl_b32 s45, s50, 3
    s_add_u32 s45, s45, 3
    s_branch L_dec""")
    g.label("L_decm")
    g("s_add_u32 s50, s50, 82")
    g.label("L_decn")
    g("""s_cmp_ge_u32 s50, 49
    s_cselect_b32 s98, 1, 0
    s_mul_i32 s51, s98, 49
    s_sub_u32 s50, s50, s51
    s_mul_i32 s51, s50, 37
    s_lshr_b32 s51, s51, 8
    s_add_u32 s45, s50, s51
    s_and_b32 s51, s45, 7
    s_cmp_ge_u32 s51, 3
    s_addc_u32 s45, s45, 0""")
    g.label("L_dec")
    g(f"""
    s_sub_u32 s3, s3, 1
    s_cbranch_scc1 L_COMM
    s_cmp_lt_u32 s44, 128
    s_cbranch_scc0 L_nq""")
    qa(g)
    g.label("L_nq")
    gu(g)
    secondary(g)
    comm(g)
    g.label("L_fin")
    if c['stamps']:
        g("s_mov_b64 exec, -1\ns_getreg_b32 s92, hwreg(HW_REG_XCC_ID)\ns_waitcnt vmcnt(0) lgkmcnt(0)\nv_mov_b32 v3, 0")
        for k in range(8): g(f"v_writelane_b32 v3, s{64+2*k}, {k}")
        g(f"""v_writelane_b32 v3, s92, 8
        v_writelane_b32 v3, s44, 9
        v_writelane_b32 v3, s96, 10
        s_mul_i32 s50, s2, 5
        s_add_u32 s50, s50, s3
        s_lshl_b32 s50, s50, 6
        s_add_u32 s50, s50, {STAMP}
        v_lshlrev_b32 v2, 2, v0
        s_mov_b64 exec, 0xffff
        buffer_store_dword v3, v2, s[40:43], s50 offen""")
    g.label("L_end")
    g("s_endpgm")
    lines,added=hazard.pad(g.l)
    k=KNAME+"_kernel"
    hdr=open("cdna_kernels/"+KNAME+".s.ref").read().split("; Override")[0] if cfg.get('hdr',1) else ""
    txt=f"""{hdr}; Single persistent launch, one 5-wave workgroup per CU; generated by my own generator (dev/gen6.py).
; config: {json.dumps(c)}
; @launch grid=(256,1,1) block=(320,1,1) lds={LDS_BYTES}
.amdgcn_target "amdgcn-amd-amdhsa--gfx950"
.text
.globl {k}
.p2align 8
.type {k},@function
{k}:
""" + "\n".join(lines) + f"""
.section .rodata,"a"
.p2align 6
.amdhsa_kernel {k}
  .amdhsa_next_free_vgpr 256
  .amdhsa_next_free_sgpr 102
  .amdhsa_accum_offset 256
  .amdhsa_group_segment_fixed_size 0
  .amdhsa_kernarg_size 96
  .amdhsa_user_sgpr_count 2
  .amdhsa_user_sgpr_kernarg_segment_ptr 1
  .amdhsa_system_sgpr_workgroup_id_x 1
.end_amdhsa_kernel
"""
    return txt
if __name__=="__main__":
    out=sys.argv[1]; cfg={}
    for a in sys.argv[2:]:
        k,v=a.split("="); cfg[k]=v if k=="nt" else int(v)
    open(out,"w").write(build(cfg))
```
